```python
import torch

def _softmax(x, axis=-1):
    return torch.softmax(x, dim=axis)
def _gelu(x):
    return torch.nn.functional.gelu(x, approximate="tanh")
def _silu(x):
    return torch.nn.functional.silu(x)
def _sigmoid(x):
    return torch.sigmoid(x)
def _layernorm(x, axis=-1, eps=1e-5):
    m = x.mean(dim=axis, keepdim=True)
    v = x.var(dim=axis, keepdim=True, unbiased=False)
    return (x - m) / torch.sqrt(v + eps)
def _scatter_add(tgt, idx, src, axis=0):
    return tgt.clone().index_add_(axis, idx, src)
def _segment_sum(src, seg, n):
    out = torch.zeros((n,) + src.shape[1:], dtype=src.dtype)
    return out.index_add_(0, seg, src)
def _pad(x, pw):
    flat = tuple(v for pair in reversed(pw) for v in pair)
    return torch.nn.functional.pad(x, flat)

kernel_name = 'recurrent_scan__gqa_block_cached__mixer_token_mlp__decode'

def setup_inputs():

    _w = (lambda a: (lambda t: t.to(torch.bfloat16) if t.is_floating_point() else t)(torch.as_tensor(a)))
    def _A_setup():
        B, Sq, D = 8, 1, 640
        Hq, Hkv, Sk, Dh = 32, 32, 4096, 128
        assert Hq % Hkv == 0, (Hq, Hkv)
        return {
            "x": _w((lambda *s: torch.randn(*s, dtype=torch.bfloat16) * 0.4)(B, Sq, D)),
            "k_cache": _w((lambda *s: torch.randn(*s, dtype=torch.bfloat16) * 1.6)(B, Hkv, Sk, Dh)),
            "v_cache": _w((lambda *s: torch.randn(*s, dtype=torch.bfloat16) * 1.6)(B, Hkv, Sk, Dh)),
            "wq": _w((lambda *s: torch.randn(*s, dtype=torch.bfloat16) * 1.6)(D, Hq * Dh) * (D ** -0.5)),
            "wo": _w((lambda *s: torch.randn(*s, dtype=torch.bfloat16) * 1.6)(Hq * Dh, D) * ((Hq * Dh) ** -0.5)),
        }
    _A_in = _A_setup()

    def _B_setup():
        B, S, D, F = 8, 1, 640, 1728
        return {
            "x": _w((lambda *s: torch.randn(*s, dtype=torch.bfloat16) * 0.4)(B, S, D)),
            "w1": _w((lambda *s: torch.randn(*s, dtype=torch.bfloat16) * 1.6)(S, F) * (S ** -0.5)),
            "b1": _w((lambda *s: torch.randn(*s, dtype=torch.bfloat16) * 1.6)(F) * 0.02),
            "w2": _w((lambda *s: torch.randn(*s, dtype=torch.bfloat16) * 1.6)(F, S) * (F ** -0.5)),
            "b2": _w((lambda *s: torch.randn(*s, dtype=torch.bfloat16) * 1.6)(S) * 0.02),
        }
    _B_in = _B_setup()

    return {
        "A_x": _A_in["x"],
        "A_k_cache": _A_in["k_cache"],
        "A_v_cache": _A_in["v_cache"],
        "A_wq": _A_in["wq"],
        "A_wo": _A_in["wo"],
        "B_x": _B_in["x"],
        "B_w1": _B_in["w1"],
        "B_b1": _B_in["b1"],
        "B_w2": _B_in["w2"],
        "B_b2": _B_in["b2"],
    }

def reference(A_x, A_k_cache, A_v_cache, A_wq, A_wo, B_x, B_w1, B_b1, B_w2, B_b2):
    def _A_ref(x, k_cache, v_cache, wq, wo):
        B, Sq, D = x.shape
        Hq, Dh = 32, 128
        Hkv = k_cache.shape[1]
        rep = Hq // Hkv
        q = (lambda x, *d: x.permute(*d))((x @ wq).reshape(B, Sq, Hq, Dh), 0, 2, 1, 3)
        k = (lambda x, n, axis: torch.repeat_interleave(x, n, dim=axis))(k_cache, rep, axis=1)
        v = (lambda x, n, axis: torch.repeat_interleave(x, n, dim=axis))(v_cache, rep, axis=1)
        scores = torch.einsum("bhqd,bhkd->bhqk", q, k) * (Dh ** -0.5)
        p = _softmax(scores, axis=-1)
        o = torch.einsum("bhqk,bhkd->bhqd", p, v)
        return (lambda x, *d: x.permute(*d))(o, 0, 2, 1, 3).reshape(B, Sq, Hq * Dh) @ wo

    def _B_ref(x, w1, b1, w2, b2):
        B, S, D = x.shape
        h = _layernorm(x, axis=-1)
        u = torch.einsum("bsd,sf->bdf", h, w1) + b1
        u = _gelu(u)
        y = torch.einsum("bdf,fs->bds", u, w2) + b2
        return (lambda x, *d: x.permute(*d))(y, 0, 2, 1)

    x = A_x
    xn = _layernorm(x, axis=-1)
    s = _A_ref(xn, A_k_cache, A_v_cache, A_wq, A_wo)
    g = _silu(_B_ref(xn, B_w1, B_b1, B_w2, B_b2))
    return x + s * g
```

```python
import re

TRANS = ("v_exp_f32", "v_log_f32", "v_rcp_f32", "v_rsq_f32", "v_sqrt_f32", "v_sin_f32", "v_cos_f32", "v_rcp_iflag_f32")

def _regs(tok):
    tok = tok.strip()
    tok = tok.replace("-", "").replace("abs(", "").replace("|", "").replace(")", "")
    m = re.fullmatch(r"([vsa])(\d+)", tok)
    if m: return {(m.group(1), int(m.group(2)))}
    m = re.fullmatch(r"([vsa])\[(\d+):(\d+)\]", tok)
    if m: return {(m.group(1), i) for i in range(int(m.group(2)), int(m.group(3)) + 1)}
    if tok in ("vcc", "vcc_lo", "vcc_hi"): return {("vcc", 0)}
    if tok in ("exec", "exec_lo", "exec_hi"): return {("exec", 0)}
    if tok == "m0": return {("m0", 0)}
    return set()

class Ins:
    __slots__ = ("text", "op", "kind", "w", "r", "srcc", "passes", "slots", "dpp", "ab")
    def __init__(self, text):
        self.text = text
        t = text.split(";")[0].strip()
        parts = t.split(None, 1)
        op = parts[0]
        self.op = op
        rest = parts[1] if len(parts) > 1 else ""
        ops = []
        cur = ""; depth = 0
        for ch in rest:
            if ch == "[": depth += 1
            if ch == "]": depth -= 1
            if ch == "," and depth == 0:
                ops.append(cur); cur = ""
            else:
                cur += ch
        if cur.strip(): ops.append(cur)
        toks = []
        for o in ops:
            o = o.strip()
            first = o.split()[0] if o.split() else ""
            toks.append(first)
        self.w = set(); self.r = set(); self.srcc = set(); self.ab = set()
        self.passes = 0; self.slots = 1
        self.dpp = ("quad_perm" in t or "row_" in t or "_dpp" in op)
        base = op.replace("_e32", "").replace("_e64", "").replace("_dpp", "").replace("_sdwa", "")
        if op == "s_nop":
            self.kind = "nop"; self.slots = int(toks[0], 0) + 1
        elif op.startswith("v_mfma"):
            self.kind = "mfma"
            self.w = _regs(toks[0]); self.ab = _regs(toks[1]) | _regs(toks[2]); self.srcc = _regs(toks[3])
            self.r = self.ab | self.srcc
            if "32x32x16" in op or "32x32x8" in op: self.passes = 8
            elif "16x16x32" in op or "16x16x16" in op: self.passes = 4
            elif "4x4x4" in op: self.passes = 2
            else: self.passes = 16
        elif op.startswith("v_"):
            self.kind = "valu"
            if base.startswith("v_cmp"):
                self.w = _regs(toks[0]);
                for x in toks[1:]: self.r |= _regs(x)
            elif base in ("v_readlane_b32", "v_readfirstlane_b32"):
                self.kind = "rdlane"
                self.w = _regs(toks[0])
                for x in toks[1:]: self.r |= _regs(x)
            elif base.startswith("v_permlane"):
                self.kind = "permlane"
                self.w = _regs(toks[0]) | _regs(toks[1]); self.r = set(self.w)
            else:
                self.w = _regs(toks[0])
                srcs = toks[1:]
                if base in ("v_add_co_u32", "v_addc_co_u32", "v_sub_co_u32", "v_subb_co_u32"):
                    self.w |= _regs(toks[1]); srcs = toks[2:]
                for x in srcs: self.r |= _regs(x)
                if base in ("v_fmac_f32", "v_dot2c_f32_bf16", "v_writelane_b32") or self.dpp:
                    self.r |= _regs(toks[0])
                if base == "v_cndmask_b32" and len(toks) == 3: self.r |= {("vcc", 0)}
                if base in TRANS: self.kind = "trans"
                if base.startswith("v_dot2"): self.kind = "dot"
        elif op.startswith("ds_"):
            self.kind = "ds"
            if op.startswith("ds_read") or "_rtn" in op or "permute" in op or "swizzle" in op:
                self.w = _regs(toks[0])
                for x in toks[1:]: self.r |= _regs(x)
            else:
                for x in toks: self.r |= _regs(x)
        elif op.startswith("buffer_") or op.startswith("global_"):
            self.kind = "vmem"
            islds = re.search(r"\blds\b", t) is not None
            if islds:
                self.kind = "ldsdma"
                for x in toks: self.r |= _regs(x)
                self.r |= {("m0", 0)}
            elif "load" in op:
                self.w = _regs(toks[0])
                for x in toks[1:]: self.r |= _regs(x)
            elif "atomic" in op:
                for x in toks: self.r |= _regs(x)
                if "sc0" in t: self.w = _regs(toks[0])
            else:
                for x in toks: self.r |= _regs(x)
                if "x4" in op or "x3" in op:
                    self.kind = "wstore"
                    self.srcc = _regs(toks[0]) if op.startswith("buffer_") else _regs(toks[1])
        elif op.startswith("s_"):
            self.kind = "salu"
            if op.startswith("s_cmp") or op.startswith("s_cbranch") or op in ("s_branch", "s_waitcnt", "s_barrier", "s_sleep", "s_setprio", "s_endpgm"):
                for x in toks: self.r |= _regs(x)
            else:
                if toks: self.w = _regs(toks[0])
                for x in toks[1:]: self.r |= _regs(x)
        else:
            self.kind = "other"

VALUK = ("valu", "trans", "dot", "rdlane", "permlane")
MF_D = {2: 5, 4: 8, 8: 12, 16: 20}
MF_OVL = {2: 4, 4: 6, 8: 10, 16: 18}
MF_WAR = {2: 1, 4: 3, 8: 7, 16: 15}

def need(p, c):
    n = 0
    pv = {x for x in p.w if x[0] in ("v", "a")}
    ps = {x for x in p.w if x[0] in ("s", "vcc")}
    if p.kind in VALUK:
        if pv & c.r:
            if c.dpp: n = max(n, 2)
            if c.kind == "rdlane": n = max(n, 1)
            if c.kind == "permlane": n = max(n, 2)
            if c.kind == "mfma": n = max(n, 2)
            if p.kind == "trans" and c.kind in VALUK + ("mfma",) and c.kind != "trans": n = max(n, 1)
            if p.kind == "trans" and c.kind in ("ds", "vmem", "wstore"): n = max(n, 1)
        if p.kind == "dot" and (pv & (c.r | c.w)):
            same = (c.op == p.op)
            if same:
                srcs = c.r - c.w
                if pv & srcs: n = max(n, 3)
            else:
                n = max(n, 3)
        if ps & c.r:
            if c.kind in VALUK: n = max(n, 4 if c.kind == "rdlane" else 2)
            if c.kind in ("vmem", "ldsdma", "wstore"): n = max(n, 5)
            if c.kind == "salu": n = max(n, 1)
    if p.kind == "mfma":
        if c.kind == "mfma":
            if pv & c.ab: n = max(n, MF_D[p.passes])
            if pv & c.srcc:
                if c.srcc == pv and c.passes == p.passes: n = max(n, 2 if p.passes == 2 else 0)
                else: n = max(n, MF_OVL[p.passes])
            elif pv & c.w:
                n = max(n, MF_OVL[p.passes])
        else:
            if pv & (c.r | c.w): n = max(n, MF_D[p.passes])
            if c.kind in VALUK and (p.srcc & c.w): n = max(n, MF_WAR[p.passes])
            if c.kind in ("ds", "vmem") and (p.srcc & c.w): n = max(n, MF_WAR[p.passes])
    if p.kind == "salu" and ("m0", 0) in p.w and c.kind == "ldsdma": n = max(n, 1)
    if p.kind == "wstore" and (p.srcc & c.w): n = max(n, 2)
    return n

class Asm:
    def __init__(self):
        self.lines = []
        self.hist = []
        self.nlab = 0
    def raw(self, s):
        self.lines.append(s)
    def label(self, name):
        self.lines.append(name + ":")
    def newlabel(self, base="L"):
        self.nlab += 1
        return "%s_%d" % (base, self.nlab)
    def __call__(self, text):
        for t in text.strip().split("\n"):
            t = t.strip()
            if not t or t.startswith(";"):
                if t: self.lines.append("  " + t)
                continue
            if t.endswith(":"):
                self.label(t[:-1]); continue
            ins = Ins(t)
            dist = 0; pad = 0
            for p in reversed(self.hist):
                nd = need(p, ins)
                if nd > dist: pad = max(pad, nd - dist)
                dist += p.slots
                if dist >= 24: break
            while pad > 0:
                k = min(pad, 16)
                nop = Ins("s_nop %d" % (k - 1))
                self.lines.append("  s_nop %d" % (k - 1)); self.hist.append(nop)
                pad -= k
            self.lines.append("  " + t)
            self.hist.append(ins)
            if len(self.hist) > 64: self.hist = self.hist[-40:]
    def flush_hazards(self, n=20):
        self("s_nop %d" % (min(n, 16) - 1))
    def text(self):
        return "\n".join(self.lines) + "\n"
```

```python
import sys, struct
sys.path.insert(0, "gen")
from asmlib import Asm

KN = "recurrent_scan__gqa_block_cached__mixer_token_mlp__decode_kernel"
def f32(x): return "0x%08x" % struct.unpack("<I", struct.pack("<f", x))[0]

HDR = open("recurrent_scan__gqa_block_cached__mixer_token_mlp__decode.s.ref").read().split("; Override launch")[0]

RING = 0
SC   = 131072
XNP  = SC
QP   = SC + 16384
QB   = QP + 4096
FL   = QB + 256
GY   = FL + 256
LDS_TOTAL = GY + 2048
F_FULL, F_BAR0, F_BAR1, F_LAST, F_FREE, F_MX = 0, 4, 8, 12, 64, 128
WS_PART = 0
WS_GATE = 0x100000

def gen(D=20, wq_pol="", wo_pol="", stamp=False, out="recurrent_scan__gqa_block_cached__mixer_token_mlp__decode.s"):
    A = Asm()
    A.raw(HDR.rstrip())
    A.raw("; @launch grid=(256,1,1) block=(576,1,1) lds=%d" % LDS_TOTAL)
    if stamp: A.raw("; STAMP2")
    A.raw('.amdgcn_target "amdgcn-amd-amdhsa--gfx950"')
    A.raw(".text"); A.raw(".globl " + KN); A.raw(".p2align 8"); A.raw(".type %s,@function" % KN)
    A.label(KN)
    A("""
    s_load_dwordx4 s[4:7], s[0:1], 8
    s_cmp_ge_u32 s2, 256
    s_cbranch_scc1 L_end
    v_lshrrev_b32 v1, 6, v0
    s_and_b32 s3, s2, 7
    s_lshr_b32 s36, s2, 3
    v_readfirstlane_b32 s34, v1
    s_and_b32 s37, s36, 3
    s_lshl_b32 s3, s3, 2
    s_add_u32 s37, s37, s3
    s_lshr_b32 s36, s36, 2
    s_lshl_b32 s38, s36, 5
    s_add_u32 s38, s38, s37
    s_cmp_lg_u32 s34, 0
    s_cbranch_scc1 L_worker
    """)
    A("s_setprio 3")
    if stamp: A("s_memrealtime s[60:61]")
    A("""
    v_lshrrev_b32 v2, 4, v0
    v_and_b32 v3, 15, v0
    v_xor_b32 v3, v3, v2
    v_lshlrev_b32 v2, 8, v2
    v_lshl_add_u32 v4, v3, 4, v2
    v_xor_b32 v5, 64, v4
    v_xor_b32 v6, 0x80, v4
    v_xor_b32 v7, 0xc0, v4
    v_lshlrev_b32 v10, 2, v0
    v_add_u32 v10, %d, v10
    v_mov_b32 v9, 0
    s_lshl_b32 s39, s38, 20
    s_mov_b32 s42, 0x100000
    s_mov_b32 s43, 0x20000
    s_mov_b32 s45, 0
    s_mov_b32 s48, 0
    s_mov_b32 m0, 0
    s_waitcnt lgkmcnt(0)
    s_add_u32 s40, s4, s39
    s_addc_u32 s41, s5, 0
    """ % FL)
    def ld(t): return "buffer_load_dwordx4 v%d, s[40:43], s45 offen offset:%d nt lds" % (4 + t, t * 1024)
    for a in range(4):
        for t in range(4):
            if a * 4 + t >= D: A("s_waitcnt vmcnt(%d)" % (D - 1))
            A(ld(t))
        A("s_add_u32 s45, s45, 4096")
        A("s_add_u32 s48, s48, 4096")
        A("s_mov_b32 m0, s48")
    A("""
    ds_write_b32 v10, v9
    v_mov_b32 v10, %d
    v_mov_b32 v8, 0
    s_add_u32 s6, s6, s39
    s_addc_u32 s7, s7, 0
    s_mov_b32 s44, 1
    s_waitcnt lgkmcnt(0)
    s_barrier
    """ % FL)
    lag = (15 + D) // 16; sigj = (15 + D) % 16
    A.label("L_ld")
    A("""
    s_waitcnt lgkmcnt(0)
    v_readfirstlane_b32 s46, v8
    s_lshr_b32 s47, s44, 3
    s_cmp_ge_u32 s46, s47
    s_cbranch_scc0 L_ld_slow
    """)
    A.label("L_ld_go")
    for a in range(4):
        for t in range(4):
            j = a * 4 + t
            A("s_waitcnt vmcnt(%d)" % (D - 1))
            A(ld(t))
            if j == sigj:
                A("""
                s_sub_u32 s47, s44, %d
                v_mov_b32 v9, s47
                s_mov_b64 exec, 1
                ds_write_b32 v10, v9 offset:%d
                s_mov_b64 exec, -1
                """ % (lag - 1, F_FULL))
        A("s_add_u32 s45, s45, 4096")
        A("s_add_u32 s48, s48, 4096")
        if a == 3: A("s_and_b32 s48, s48, 0x1ffff")
        A("s_mov_b32 m0, s48")
        if a == 2:
            A("""
            s_add_u32 s47, s44, 1
            s_and_b32 s47, s47, 7
            s_lshl_b32 s47, s47, 2
            s_add_u32 s47, s47, %d
            v_mov_b32 v11, s47
            ds_read_b32 v8, v11
            """ % (FL + F_FREE))
    A("""
    s_add_u32 s44, s44, 1
    s_cmp_lg_u32 s44, 64
    s_cbranch_scc1 L_ld_nosw
    s_mov_b32 s40, s6
    s_mov_b32 s41, s7
    s_mov_b32 s45, 0
    """)
    A.label("L_ld_nosw")
    A("""
    s_cmp_lt_u32 s44, 128
    s_cbranch_scc1 L_ld
    s_mov_b64 exec, 1
    """)
    for k in range(lag, 0, -1):
        blk = 128 - k
        A("s_waitcnt vmcnt(%d)" % (16 * (k - 1)))
        A("v_mov_b32 v9, %d" % (blk + 1) if blk + 1 <= 64 else "v_mov_b32 v9, 0x%x" % (blk + 1))
        A("ds_write_b32 v10, v9 offset:%d" % F_FULL)
    if stamp:
        A("""
        s_memrealtime s[62:63]
        s_load_dwordx2 s[32:33], s[0:1], 96
        s_getreg_b32 s64, hwreg(HW_REG_XCC_ID)
        s_waitcnt lgkmcnt(0)
        v_mov_b32 v20, s60
        v_mov_b32 v21, s62
        v_mov_b32 v22, s64
        v_mov_b32 v23, 0
        s_lshl_b32 s65, s2, 6
        s_add_u32 s65, s65, 0x200000
        v_mov_b32 v24, s65
        global_store_dwordx4 v24, v[20:23], s[32:33]
        """)
    A("s_waitcnt lgkmcnt(0)")
    A("s_endpgm")
    A.label("L_ld_slow")
    A("""
    s_sleep 1
    ds_read_b32 v8, v11
    s_branch L_ld
    """)

    LANE, G, I = 1, 2, 3
    M = [4, 5, 6, 7]
    AD = [8, 9, 10, 11]
    VFL, VFREE, VSC, T0 = 12, 13, 14, 15
    QA = 16
    DK = 32
    GT = 48
    W = 64
    AT = 144
    ACC = 152
    VMAX, VH, VGA, VC1, VT1, VT2, VONE = 156, 157, 158, 159, 160, 161, 162
    NV = 164
    def q(r): return "v[%d:%d]" % (r, r + 3)
    def d2(r): return "v[%d:%d]" % (r, r + 1)

    def wave_red(op, v, sdst):
        A("""
        {op}_dpp v{v}, v{v}, v{v} quad_perm:[1,0,3,2] row_mask:0xf bank_mask:0xf
        {op}_dpp v{v}, v{v}, v{v} quad_perm:[2,3,0,1] row_mask:0xf bank_mask:0xf
        {op}_dpp v{v}, v{v}, v{v} row_half_mirror row_mask:0xf bank_mask:0xf
        {op}_dpp v{v}, v{v}, v{v} row_mirror row_mask:0xf bank_mask:0xf
        {op}_dpp v{v}, v{v}, v{v} row_bcast:15 row_mask:0xa bank_mask:0xf
        {op}_dpp v{v}, v{v}, v{v} row_bcast:31 row_mask:0xc bank_mask:0xf
        v_readlane_b32 s{s}, v{v}, 63
        """.format(op=op, v=v, s=sdst))
    def rbf(dst, src):
        A("v_cvt_pk_bf16_f32 v%d, v%d, v%d" % (dst, src, src))
        A("v_and_b32 v%d, 0xffff0000, v%d" % (dst, dst))
    def cbar(off):
        lab = A.newlabel("L_bar")
        A("""
        s_waitcnt lgkmcnt(0)
        s_mov_b64 exec, 1
        ds_add_u32 v{fl}, v{one} offset:{off}
        s_mov_b64 exec, -1
        {lab}:
        ds_read_b32 v{t}, v{fl} offset:{off}
        s_waitcnt lgkmcnt(0)
        v_readfirstlane_b32 s50, v{t}
        s_cmp_lt_u32 s50, 8
        s_cbranch_scc1 {lab}
        """.format(fl=VFL, one=VONE, off=off, lab=lab, t=T0))
    def wait_full(sneed):
        lab = A.newlabel("L_wf"); dn = A.newlabel("L_wfd")
        A("""
        {lab}:
        ds_read_b32 v{t}, v{fl} offset:{off}
        s_waitcnt lgkmcnt(0)
        v_readfirstlane_b32 s50, v{t}
        s_cmp_gt_u32 s50, s{need}
        s_cbranch_scc1 {dn}
        s_sleep 1
        s_branch {lab}
        {dn}:
        """.format(lab=lab, dn=dn, t=T0, fl=VFL, off=F_FULL, need=sneed))
    def layernorm_stats(xs, sm, ssd, tmp, tmp2):
        A("v_add_f32 v%d, v%d, v%d" % (tmp, xs[0], xs[1]))
        for x in xs[2:]: A("v_add_f32 v%d, v%d, v%d" % (tmp, tmp, x))
        wave_red("v_add_f32", tmp, 51)
        A("v_mov_b32 v%d, %s" % (tmp2, f32(1.0 / 640)))
        A("v_mul_f32 v%d, s51, v%d" % (tmp2, tmp2))
        first = True
        for x in xs:
            A("v_sub_f32 v%d, v%d, v%d" % (VT1, x, tmp2))
            if first: A("v_mul_f32 v%d, v%d, v%d" % (tmp, VT1, VT1)); first = False
            else: A("v_fmac_f32 v%d, v%d, v%d" % (tmp, VT1, VT1))
        wave_red("v_add_f32", tmp, 51)
        rbf(tmp2, tmp2)
        A("v_readfirstlane_b32 s%d, v%d" % (sm, tmp2))
        A("v_mov_b32 v%d, %s" % (tmp, f32(1.0 / 640)))
        A("v_mul_f32 v%d, s51, v%d" % (tmp, tmp))
        rbf(tmp, tmp)
        A("v_add_f32 v%d, %s, v%d" % (tmp, f32(1e-5), tmp))
        rbf(tmp, tmp)
        A("v_sqrt_f32 v%d, v%d" % (tmp, tmp))
        rbf(tmp, tmp)
        A("v_readfirstlane_b32 s%d, v%d" % (ssd, tmp))
    def norm_apply(dst, x, sm, vsd, vrcp):
        A("v_subrev_f32 v%d, s%d, v%d" % (VT1, sm, x))
        rbf(VT1, VT1)
        A("v_mul_f32 v%d, v%d, v%d" % (VT2, VT1, vrcp))
        A("v_fma_f32 v%d, -v%d, v%d, v%d" % (VT1, VT2, vsd, VT1))
        A("v_fmac_f32 v%d, v%d, v%d" % (VT2, VT1, vrcp))
        rbf(dst, VT2)

    A.label("L_worker")
    A("""
    s_load_dwordx16 s[8:23], s[0:1], 0
    s_load_dwordx8 s[24:31], s[0:1], 64
    s_load_dwordx2 s[32:33], s[0:1], 96
    s_sub_u32 s35, s34, 1
    v_and_b32 v1, 63, v0
    v_lshrrev_b32 v2, 4, v1
    v_and_b32 v3, 15, v1
    """)
    if stamp: A("s_memrealtime s[60:61]")
    A("""
    s_mul_i32 s52, s37, 26
    s_lshr_b32 s52, s52, 8
    s_mul_i32 s53, s52, 10
    s_sub_u32 s53, s37, s53
    """)
    A("""
    v_lshlrev_b32 v36, 15, v2
    v_lshl_add_u32 v36, v3, 4, v36
    v_lshlrev_b32 v37, 2, v1
    s_lshl_b32 s54, s53, 7
    v_lshl_add_u32 v38, v1, 1, s54
    s_mul_i32 s55, s36, 1280
    s_mul_i32 s56, s35, %d
    s_lshl_b32 s57, s37, 8
    s_add_u32 s56, s56, s57
    s_mov_b32 s42, 10240
    s_mov_b32 s43, 0x20000
    s_mov_b32 s46, %d
    s_mov_b32 s47, 0x20000
    s_waitcnt lgkmcnt(0)
    s_mov_b32 s40, s8
    s_mov_b32 s41, s9
    s_mov_b32 s44, s14
    s_mov_b32 s45, s15
    """ % (80 * 8192, 640 * 8192))
    XR = 39
    for k in range(5):
        A("buffer_load_dword v%d, v37, s[40:43], s55 offen offset:%d" % (XR + k, 256 * k))
    A("buffer_load_ushort v44, v38, s[40:43], s55 offen")
    for u in range(20):
        A("buffer_load_dwordx4 %s, v36, s[44:47], s56 offen %s" % (q(W + 4 * u), wq_pol))
        if u < 19:
            A("s_add_u32 s56, s56, %d" % (8192 if u % 4 != 3 else 13 * 8192))
    A("""
    v_mov_b32 v{one}, 1
    v_mov_b32 v{fl}, {FL}
    s_lshl_b32 s57, s35, 2
    s_add_u32 s57, s57, {FREE}
    v_mov_b32 v{free}, s57
    v_lshrrev_b32 v45, 1, v3
    v_and_b32 v46, 1, v3
    v_mov_b32 v47, 0xffff
    v_mov_b32 v48, 0xffff0000
    v_cmp_eq_u32 vcc, 1, v46
    v_cndmask_b32 v47, v47, v48, vcc
    """.format(one=VONE, fl=VFL, FL=FL, FREE=FL + F_FREE, free=VFREE))
    for r in range(4):
        A("v_cmp_eq_u32 vcc, %d, v45" % r)
        A("v_cndmask_b32 v%d, 0, v47, vcc" % M[r])
    for k in range(1, 4):
        A("v_cmp_eq_u32 s[%d:%d], %d, v2" % (64 + 2 * k, 65 + 2 * k, k))
    A("s_barrier")
    A("s_waitcnt vmcnt(20)")
    XF = list(range(45, 55))
    XN = list(range(55, 64)) + [35]
    for k in range(5):
        A("v_lshlrev_b32 v%d, 16, v%d" % (XF[2 * k], XR + k))
        A("v_and_b32 v%d, 0xffff0000, v%d" % (XF[2 * k + 1], XR + k))
    A("v_lshlrev_b32 v44, 16, v44")
    layernorm_stats(XF, 58, 59, 33, 34)
    A("v_mov_b32 v33, s59")
    A("v_rcp_f32 v34, v33")
    for k in range(10): norm_apply(XN[k], XF[k], 58, 33, 34)
    norm_apply(44, 44, 58, 33, 34)
    A("v_lshlrev_b32 v37, 3, v1")
    A("v_add_u32 v37, %d, v37" % XNP)
    for k in range(5):
        A("v_cvt_pk_bf16_f32 v%d, v%d, v%d" % (XF[0], XN[2 * k], XN[2 * k]) if False else "v_cvt_pk_bf16_f32 v40, v%d, v%d" % (XN[2 * k], XN[2 * k]))
        A("v_cvt_pk_bf16_f32 v41, v%d, v%d" % (XN[2 * k + 1], XN[2 * k + 1]))
        A("ds_write_b64 v37, v[40:41] offset:%d" % (512 * k))
    layernorm_stats(XN, 58, 59, 33, 34)
    A("v_mov_b32 v33, s59")
    A("v_rcp_f32 v34, v33")
    norm_apply(VH, 44, 58, 33, 34)
    A("""
    s_mul_i32 s57, s35, 320
    s_add_u32 s57, s57, %d
    v_lshl_add_u32 v37, v2, 4, s57
    s_waitcnt lgkmcnt(0)
    """ % XNP)
    for a in range(5):
        A("ds_read_b128 %s, v37 offset:%d" % (q(QA + 4 * a), 64 * a))
    A("s_waitcnt lgkmcnt(0)")
    for u in range(20):
        at = AT + 4 * (u % 2)
        for r in range(4): A("v_and_b32 v%d, v%d, v%d" % (at + r, QA + u, M[r]))
        A("s_waitcnt vmcnt(%d)" % (19 - u))
        A("v_mfma_f32_16x16x32_bf16 %s, %s, %s, %s" % (q(ACC), q(at), q(W + 4 * u), "0" if u == 0 else q(ACC)))
    A("""
    s_lshl_b32 s57, s35, 9
    s_add_u32 s57, s57, {QP}
    v_lshlrev_b32 v36, 5, v3
    v_lshl_add_u32 v36, v2, 4, v36
    v_add_u32 v36, s57, v36
    s_mov_b32 exec_hi, 0
    ds_write_b128 v36, {acc}
    s_mov_b64 exec, -1
    """.format(QP=QP, acc=q(ACC)))
    VQPW = 163
    A("v_mov_b32 v%d, v36" % VQPW)
    cbar(F_BAR0)
    A("v_lshlrev_b32 v37, 3, v1")
    A("v_add_u32 v37, %d, v37" % QP)
    for w in range(8):
        A("ds_read_b64 %s, v37 offset:%d" % (d2(40 + 2 * w), 512 * w))
    A("""
    s_lshl_b32 s57, s35, 14
    v_xor_b32 v38, v2, v3
    v_lshlrev_b32 v38, 4, v38
    v_lshl_add_u32 v38, v3, 8, v38
    v_add_u32 v{a0}, s57, v38
    v_xor_b32 v{a1}, 64, v{a0}
    v_xor_b32 v{a2}, 0x80, v{a0}
    v_xor_b32 v{a3}, 0xc0, v{a0}
    """.format(a0=AD[0], a1=AD[1], a2=AD[2], a3=AD[3]))
    A("""
    v_and_b32 v38, 48, v1
    v_and_b32 v39, 3, v1
    v_lshl_add_u32 v38, v39, 2, v38
    v_bfe_u32 v39, v1, 2, 2
    v_add_u32 v38, v38, v39
    s_lshl_b32 s57, s35, 11
    s_add_u32 s57, s57, {SC}
    v_lshl_add_u32 v{vsc}, v38, 2, s57
    v_mov_b32 v{vmax}, 0xff800000
    v_mov_b32 v{vga}, 0
    v_mov_b32 v{vc1}, {c1}
    s_waitcnt lgkmcnt(0)
    """.format(SC=SC, vsc=VSC, vmax=VMAX, vga=VGA, vc1=VC1,
               c1=f32(-2.0 * 0.7978845608028654 * 1.4426950408889634 * 0.044715)))
    for w in range(1, 8):
        A("v_add_f32 v40, v40, v%d" % (40 + 2 * w))
        A("v_add_f32 v41, v41, v%d" % (41 + 2 * w))
    A("""
    v_cvt_pk_bf16_f32 v40, v40, v41
    v_lshlrev_b32 v37, 2, v1
    v_add_u32 v37, {QB}, v37
    ds_write_b32 v37, v40
    v_lshlrev_b32 v37, 4, v2
    v_add_u32 v37, {QB}, v37
    s_waitcnt lgkmcnt(0)
    """.format(QB=QB))
    for s in range(4):
        A("ds_read_b128 %s, v37 offset:%d" % (q(QA + 4 * s), 64 * s))
    A("""
    s_mul_i32 s57, s52, 1152
    s_mul_i32 s58, s35, 144
    s_add_u32 s57, s57, s58
    s_add_u32 s20, s20, s57
    s_addc_u32 s21, s21, 0
    s_add_u32 s22, s22, s57
    s_addc_u32 s23, s23, 0
    s_add_u32 s24, s24, s57
    s_addc_u32 s25, s25, 0
    s_mov_b32 s49, 0
    s_mov_b32 s48, s35
    s_mov_b32 s59, {scale}
    """.format(scale=f32(128 ** -0.5)))
    if stamp: A("s_memrealtime s[62:63]")
    A.label("L_k")
    wait_full(48)
    for tau in range(4):
        for s in range(4):
            A("ds_read_b128 %s, v%d offset:%d" % (q(W + 16 * tau + 4 * s), AD[s], 4096 * tau))
    for tau in range(4):
        for s in range(4):
            k = tau * 4 + s
            A("s_waitcnt lgkmcnt(%d)" % (15 - k))
            A("v_mfma_f32_16x16x32_bf16 %s, %s, %s, %s" % (q(DK + 4 * tau), q(QA + 4 * s), q(W + 16 * tau + 4 * s), "0" if s == 0 else q(DK + 4 * tau)))
    A("""
    s_add_u32 s50, s49, 1
    v_mov_b32 v{t}, s50
    s_mov_b64 exec, 1
    ds_write_b32 v{free}, v{t}
    s_mov_b64 exec, -1
    v_cndmask_b32 v{t}, v{d0}, v{d1}, s[66:67]
    v_cndmask_b32 v{t}, v{t}, v{d2}, s[68:69]
    v_cndmask_b32 v{t}, v{t}, v{d3}, s[70:71]
    """.format(t=VT1, free=VFREE, d0=DK, d1=DK + 4, d2=DK + 8, d3=DK + 12))
    rbf(VT1, VT1)
    A("v_mul_f32 v%d, s59, v%d" % (VT1, VT1))
    rbf(VT1, VT1)
    A("v_max_f32 v%d, v%d, v%d" % (VMAX, VMAX, VT1))
    A("ds_write_b32 v%d, v%d" % (VSC, VT1))
    A("v_add_u32 v%d, 0x100, v%d" % (VSC, VSC))
    A("""
    s_cmp_ge_u32 s49, 6
    s_cbranch_scc1 L_k_nogate
    s_cmp_ge_u32 s52, 3
    s_cbranch_scc1 L_k_nogate
    s_load_dwordx4 s[72:75], s[20:21], 0
    s_load_dwordx2 s[76:77], s[20:21], 16
    s_load_dwordx4 s[80:83], s[22:23], 0
    s_load_dwordx2 s[84:85], s[22:23], 16
    s_load_dwordx4 s[88:91], s[24:25], 0
    s_load_dwordx2 s[92:93], s[24:25], 16
    s_add_u32 s20, s20, 24
    s_addc_u32 s21, s21, 0
    s_add_u32 s22, s22, 24
    s_addc_u32 s23, s23, 0
    s_add_u32 s24, s24, 24
    s_addc_u32 s25, s25, 0
    s_waitcnt lgkmcnt(0)
    """)
    C0 = f32(-2.0 * 0.7978845608028654 * 1.4426950408889634)
    for pr in range(6):
        a, b, c, d_, e, f = [GT + 8 * (pr % 2) + k for k in range(6)]
        A("""
        s_lshl_b32 s94, s{w1}, 16
        s_and_b32 s95, s{w1}, 0xffff0000
        s_lshl_b32 s96, s{b1}, 16
        s_and_b32 s97, s{b1}, 0xffff0000
        v_mul_f32 v{a}, s94, v{h}
        v_mul_f32 v{b}, s95, v{h}
        v_cvt_pk_bf16_f32 v{a}, v{a}, v{b}
        v_and_b32 v{b}, 0xffff0000, v{a}
        v_lshlrev_b32 v{a}, 16, v{a}
        v_add_f32 v{a}, s96, v{a}
        v_add_f32 v{b}, s97, v{b}
        v_cvt_pk_bf16_f32 v{a}, v{a}, v{b}
        v_and_b32 v{b}, 0xffff0000, v{a}
        v_lshlrev_b32 v{a}, 16, v{a}
        v_mul_f32 v{c}, v{a}, v{a}
        v_mul_f32 v{d}, v{b}, v{b}
        v_fmaak_f32 v{c}, v{c}, v{c1}, {C0}
        v_fmaak_f32 v{d}, v{d}, v{c1}, {C0}
        v_mul_f32 v{c}, v{a}, v{c}
        v_mul_f32 v{d}, v{b}, v{d}
        v_exp_f32 v{c}, v{c}
        v_exp_f32 v{d}, v{d}
        v_add_f32 v{c}, 1.0, v{c}
        v_add_f32 v{d}, 1.0, v{d}
        v_rcp_f32 v{c}, v{c}
        v_rcp_f32 v{d}, v{d}
        v_mul_f32 v{a}, v{a}, v{c}
        v_mul_f32 v{b}, v{b}, v{d}
        v_cvt_pk_bf16_f32 v{a}, v{a}, v{b}
        v_dot2c_f32_bf16 v{acc}, s{w2}, v{a}
        """.format(w1=72 + pr, b1=80 + pr, w2=88 + pr, a=a, b=b, c=c, d=d_, h=VH, c1=VC1, C0=C0, acc=VGA))
    A.label("L_k_nogate")
    A("""
    s_add_u32 s49, s49, 1
    s_add_u32 s48, s48, 8
    s_cmp_lt_u32 s49, 8
    s_cbranch_scc1 L_k
    """)
    A("""
    s_lshl_b32 s57, s35, 8
    s_add_u32 s57, s57, {GY}
    v_lshl_add_u32 v36, v1, 2, s57
    ds_write_b32 v36, v{vga}
    s_lshl_b32 s57, s35, 11
    s_add_u32 s57, s57, {SC}
    v_lshl_add_u32 v37, v1, 5, s57
    s_waitcnt lgkmcnt(0)
    ds_read_b128 v[40:43], v37
    ds_read_b128 v[44:47], v37 offset:16
    """.format(GY=GY, vga=VGA, SC=SC))
    wave_red("v_max_f32", VMAX, 58)
    A("s_mov_b32 s59, %s" % f32(1.4426950408889634))
    A("s_waitcnt lgkmcnt(0)")
    for k in range(8):
        A("v_subrev_f32 v%d, s58, v%d" % (40 + k, 40 + k))
    for k in range(8):
        A("v_mul_f32 v%d, s59, v%d" % (40 + k, 40 + k))
    for k in range(8):
        A("v_exp_f32 v%d, v%d" % (40 + k, 40 + k))
    A("v_add_f32 v48, v40, v41")
    for k in range(2, 8): A("v_add_f32 v48, v48, v%d" % (40 + k))
    wave_red("v_add_f32", 48, 56)
    A("""
    v_mov_b32 v50, s58
    v_mov_b32 v51, s56
    s_lshl_b32 s57, s35, 3
    s_add_u32 s57, s57, {MX}
    v_mov_b32 v49, s57
    s_mov_b64 exec, 1
    ds_write_b64 v49, v[50:51]
    s_mov_b64 exec, -1
    """.format(MX=FL + F_MX))
    cbar(F_BAR1)
    A("""
    v_and_b32 v49, 7, v1
    v_lshlrev_b32 v49, 3, v49
    v_add_u32 v49, {MX}, v49
    ds_read_b64 v[50:51], v49
    s_waitcnt lgkmcnt(0)
    v_mov_b32 v52, v50
    v_max_f32_dpp v52, v52, v52 quad_perm:[1,0,3,2] row_mask:0xf bank_mask:0xf
    v_max_f32_dpp v52, v52, v52 quad_perm:[2,3,0,1] row_mask:0xf bank_mask:0xf
    v_max_f32_dpp v52, v52, v52 row_half_mirror row_mask:0xf bank_mask:0xf
    v_sub_f32 v50, v50, v52
    v_mul_f32 v50, s59, v50
    v_exp_f32 v50, v50
    v_mul_f32 v50, v50, v51
    v_add_f32_dpp v50, v50, v50 quad_perm:[1,0,3,2] row_mask:0xf bank_mask:0xf
    v_add_f32_dpp v50, v50, v50 quad_perm:[2,3,0,1] row_mask:0xf bank_mask:0xf
    v_add_f32_dpp v50, v50, v50 row_half_mirror row_mask:0xf bank_mask:0xf
    v_sub_f32 v52, s58, v52
    v_mul_f32 v52, s59, v52
    v_exp_f32 v52, v52
    v_rcp_f32 v50, v50
    v_mul_f32 v52, v52, v50
    """.format(MX=FL + F_MX))
    for k in range(8):
        A("v_mul_f32 v%d, v%d, v52" % (40 + k, 40 + k))
    for k in range(8):
        A("v_cvt_pk_bf16_f32 v%d, v%d, v%d" % (40 + k, 40 + k, 40 + k))
    A("""
    ds_write_b128 v37, v[40:43]
    ds_write_b128 v37, v[44:47] offset:16
    """)
    A("""
    s_mov_b32 s40, s32
    s_mov_b32 s41, s33
    s_mov_b32 s42, 0x110000
    s_mov_b32 s44, s16
    s_mov_b32 s45, s17
    s_mov_b32 s46, {wosz}
    """.format(wosz=4096 * 1280))
    A("""
    s_cmp_lg_u32 s35, 0
    s_cbranch_scc1 L_nogsum
    s_cmp_ge_u32 s52, 3
    s_cbranch_scc1 L_nogsum
    """)
    for w in range(8):
        A("ds_read_b32 v%d, v36 offset:%d" % (48 + w, 256 * w))
    A("""
    s_mul_i32 s57, s36, 3
    s_add_u32 s57, s57, s52
    s_mul_i32 s57, s57, 2560
    s_lshl_b32 s56, s53, 8
    s_add_u32 s57, s57, s56
    s_add_u32 s57, s57, {WG}
    v_lshlrev_b32 v36, 2, v1
    s_waitcnt lgkmcnt(0)
    """.format(WG=WS_GATE))
    for w in range(1, 8): A("v_add_f32 v48, v48, v%d" % (48 + w))
    A("buffer_store_dword v48, v36, s[40:43], s57 offen sc1")
    A.label("L_nogsum")
    A("""
    s_lshl_b32 s57, s35, 14
    v_xor_b32 v38, v2, v3
    v_lshlrev_b32 v38, 4, v38
    v_lshl_add_u32 v38, v2, 8, v38
    v_add_u32 v{a0}, s57, v38
    v_xor_b32 v{a1}, 0x440, v{a0}
    v_xor_b32 v{a2}, 0x880, v{a0}
    v_xor_b32 v{a3}, 0xcc0, v{a0}
    s_lshl_b32 s57, s35, 11
    s_add_u32 s57, s57, {SC}
    v_lshl_add_u32 v{vsc}, v2, 4, s57
    v_mov_b32 v{acc}, 0
    v_mov_b32 v{acc1}, 0
    v_mov_b32 v{acc2}, 0
    v_mov_b32 v{acc3}, 0
    s_mov_b32 s49, 0
    s_lshr_b32 s54, s35, 1
    """.format(a0=AD[0], a1=AD[1], a2=AD[2], a3=AD[3], SC=SC, vsc=VSC, acc=ACC, acc1=ACC + 1, acc2=ACC + 2, acc3=ACC + 3))
    A("""
    v_mul_u32_u24 v{vh}, 5120, v2
    v_lshl_add_u32 v{vh}, v3, 4, v{vh}
    s_lshl_b32 s55, s37, 7
    s_lshl_b32 s56, s35, 4
    s_add_u32 s55, s55, s56
    s_mul_i32 s55, s55, 1280
    """.format(vh=VH))
    VD = 32
    A.label("L_v")
    A("""
    s_cmp_lg_u32 s49, s54
    s_cbranch_scc1 L_v_nowo
    """)
    for a in range(4):
        for cb in range(5):
            u = a * 5 + cb
            A("buffer_load_dwordx4 %s, v%d, s[44:47], s55 offen offset:%d %s" % (q(W + 4 * u), VH, cb * 256, wo_pol))
        if a < 3: A("s_add_u32 s55, s55, 1280")
    A.label("L_v_nowo")
    for tau in range(4):
        A("ds_read_b128 %s, v%d offset:%d" % (q(QA + 4 * tau), VSC, 64 * tau))
    wait_full(48)
    def vrd(k):
        tau, t = k // 4, k % 4
        A("ds_read_b128 %s, v%d offset:%d" % (q(VD + 4 * (k % 8)), AD[t], 4096 * tau))
    for k in range(8): vrd(k)
    for k in range(16):
        at = AT + 4 * (k % 2)
        for r in range(4): A("v_and_b32 v%d, v%d, v%d" % (at + r, QA + k, M[r]))
        A("s_waitcnt lgkmcnt(%d)" % min(7, 15 - k))
        A("v_mfma_f32_16x16x32_bf16 %s, %s, %s, %s" % (q(ACC), q(at), q(VD + 4 * (k % 8)), q(ACC)))
        if k + 8 < 16: vrd(k + 8)
    A("""
    s_add_u32 s50, s49, 9
    v_mov_b32 v{t}, s50
    s_mov_b64 exec, 1
    ds_write_b32 v{free}, v{t}
    s_mov_b64 exec, -1
    v_add_u32 v{vsc}, 0x100, v{vsc}
    s_add_u32 s49, s49, 1
    s_add_u32 s48, s48, 8
    s_cmp_lt_u32 s49, 8
    s_cbranch_scc1 L_v
    """.format(t=VT1, free=VFREE, vsc=VSC))
    if stamp: A("s_memrealtime s[64:65]")
    A("""
    s_mov_b32 exec_hi, 0
    ds_write_b128 v{qpw}, {acc}
    s_mov_b64 exec, -1
    s_lshl_b32 s57, s35, 6
    s_add_u32 s57, s57, {QP}
    v_lshl_add_u32 v15, v2, 4, s57
    s_waitcnt lgkmcnt(0)
    s_barrier
    """.format(qpw=VQPW, acc=q(ACC), QP=QP))
    for w in range(8):
        A("ds_read_b128 %s, v15 offset:%d" % (q(32 + 4 * w), 512 * w))
    A("""
    s_mul_i32 s57, s35, 2560
    v_lshlrev_b32 v14, 5, v3
    v_lshl_add_u32 v14, v2, 4, v14
    v_add_u32 v14, s57, v14
    """)
    for w in range(1, 8):
        A("s_waitcnt lgkmcnt(%d)" % (7 - w))
        for r in range(4): A("v_add_f32 v%d, v%d, v%d" % (32 + r, 32 + r, 32 + 4 * w + r))
    for r in range(4): A("v_cvt_pk_bf16_f32 v%d, v%d, v%d" % (32 + r, 32 + r, 32 + r))
    A("s_waitcnt vmcnt(0)")
    DO = 40
    for a in range(4):
        at = QA + 4 * a
        for r in range(4): A("v_and_b32 v%d, v%d, v%d" % (at + r, 32 + a, M[r]))
    for a in range(4):
        for cb in range(5):
            A("v_mfma_f32_16x16x32_bf16 %s, %s, %s, %s" % (q(DO + 4 * cb), q(QA + 4 * a), q(W + 4 * (a * 5 + cb)), "0" if a == 0 else q(DO + 4 * cb)))
    A("s_mov_b32 exec_hi, 0")
    for cb in range(5):
        A("ds_write_b128 v14, %s offset:%d" % (q(DO + 4 * cb), 512 * cb))
    A("""
    s_mov_b64 exec, -1
    s_lshl_b32 s57, s35, 9
    v_lshl_add_u32 v15, v1, 3, s57
    s_mul_i32 s56, s38, 2560
    s_waitcnt lgkmcnt(0)
    s_barrier
    s_cmp_ge_u32 s35, 5
    s_cbranch_scc1 L_nored
    """)
    for w in range(8):
        A("ds_read_b64 %s, v15 offset:%d" % (d2(32 + 2 * w), 2560 * w))
    A("""
    s_mov_b32 s44, s8
    s_mov_b32 s45, s9
    s_mov_b32 s46, 10240
    s_mul_i32 s55, s36, 1280
    v_lshrrev_b32 v14, 1, v15
    buffer_load_dword v60, v14, s[44:47], s55 offen
    """)
    for w in range(1, 8):
        A("s_waitcnt lgkmcnt(%d)" % (7 - w))
        A("v_add_f32 v32, v32, v%d" % (32 + 2 * w))
        A("v_add_f32 v33, v33, v%d" % (33 + 2 * w))
    A("""
    buffer_store_dwordx2 v[32:33], v15, s[40:43], s56 offen sc1
    s_load_dword s58, s[26:27], 0
    s_waitcnt vmcnt(0)
    """)
    A.label("L_nored")
    A("""
    s_barrier
    s_cmp_lg_u32 s35, 0
    s_cbranch_scc1 L_noatom
    s_lshl_b32 s57, s36, 5
    v_mov_b32 v34, s57
    s_mov_b64 exec, 1
    global_atomic_add v35, v34, v{one}, s[30:31] sc0
    s_waitcnt vmcnt(0)
    ds_write_b32 v{fl}, v35 offset:{last}
    s_mov_b64 exec, -1
    s_waitcnt lgkmcnt(0)
    """.format(one=VONE, fl=VFL, last=F_LAST))
    A.label("L_noatom")
    A("""
    s_barrier
    ds_read_b32 v35, v{fl} offset:{last}
    s_waitcnt lgkmcnt(0)
    v_readfirstlane_b32 s50, v35
    s_cmp_lg_u32 s50, 31
    s_cbranch_scc1 L_fin
    s_cmp_ge_u32 s35, 5
    s_cbranch_scc1 L_fin
    s_mul_i32 s56, s36, {bstride}
    s_mul_i32 s57, s36, 7680
    s_add_u32 s57, s57, {WG}
    """.format(fl=VFL, last=F_LAST, bstride=32 * 2560, WG=WS_GATE))
    FR = 64
    for fs in range(3):
        A("buffer_load_dwordx2 %s, v15, s[40:43], s57 offen offset:%d sc1" % (d2(FR + 64 + 2 * fs), 0))
        if fs < 2: A("s_add_u32 s57, s57, 2560")
    for hh in range(32):
        A("buffer_load_dwordx2 %s, v15, s[40:43], s56 offen sc1" % d2(FR + 2 * hh))
        if hh < 31: A("s_add_u32 s56, s56, 2560")
    G0 = FR + 64
    A("""
    s_lshl_b32 s58, s58, 16
    s_mov_b32 s59, {nl2e}
    s_waitcnt vmcnt(32)
    v_add_f32 v{g0}, v{g0}, v{g2}
    v_add_f32 v{g1}, v{g1}, v{g3}
    v_add_f32 v{g0}, v{g0}, v{g4}
    v_add_f32 v{g1}, v{g1}, v{g5}
    v_cvt_pk_bf16_f32 v{g0}, v{g0}, v{g1}
    v_and_b32 v{g1}, 0xffff0000, v{g0}
    v_lshlrev_b32 v{g0}, 16, v{g0}
    v_add_f32 v{g0}, s58, v{g0}
    v_add_f32 v{g1}, s58, v{g1}
    v_cvt_pk_bf16_f32 v{g0}, v{g0}, v{g1}
    v_and_b32 v{g1}, 0xffff0000, v{g0}
    v_lshlrev_b32 v{g0}, 16, v{g0}
    v_mul_f32 v{g2}, s59, v{g0}
    v_mul_f32 v{g3}, s59, v{g1}
    v_exp_f32 v{g2}, v{g2}
    v_exp_f32 v{g3}, v{g3}
    v_add_f32 v{g2}, 1.0, v{g2}
    v_add_f32 v{g3}, 1.0, v{g3}
    v_rcp_f32 v{g2}, v{g2}
    v_rcp_f32 v{g3}, v{g3}
    v_mul_f32 v{g0}, v{g0}, v{g2}
    v_mul_f32 v{g1}, v{g1}, v{g3}
    v_cvt_pk_bf16_f32 v{g0}, v{g0}, v{g1}
    v_and_b32 v{g1}, 0xffff0000, v{g0}
    v_lshlrev_b32 v{g0}, 16, v{g0}
    """.format(nl2e=f32(-1.4426950408889634), g0=G0, g1=G0 + 1, g2=G0 + 2, g3=G0 + 3, g4=G0 + 4, g5=G0 + 5))
    for hh in range(1, 32):
        A("s_waitcnt vmcnt(%d)" % (31 - hh))
        A("v_add_f32 v%d, v%d, v%d" % (FR, FR, FR + 2 * hh))
        A("v_add_f32 v%d, v%d, v%d" % (FR + 1, FR + 1, FR + 2 * hh + 1))
    A("""
    v_cvt_pk_bf16_f32 v{f0}, v{f0}, v{f1}
    v_and_b32 v{f1}, 0xffff0000, v{f0}
    v_lshlrev_b32 v{f0}, 16, v{f0}
    v_mul_f32 v{f0}, v{f0}, v{g0}
    v_mul_f32 v{f1}, v{f1}, v{g1}
    v_cvt_pk_bf16_f32 v{f0}, v{f0}, v{f1}
    v_and_b32 v{f1}, 0xffff0000, v{f0}
    v_lshlrev_b32 v{f0}, 16, v{f0}
    v_and_b32 v61, 0xffff0000, v60
    v_lshlrev_b32 v60, 16, v60
    v_add_f32 v{f0}, v{f0}, v60
    v_add_f32 v{f1}, v{f1}, v61
    v_cvt_pk_bf16_f32 v{f0}, v{f0}, v{f1}
    s_mov_b32 s44, s28
    s_mov_b32 s45, s29
    buffer_store_dword v{f0}, v14, s[44:47], s55 offen
    """.format(f0=FR, f1=FR + 1, g0=G0, g1=G0 + 1))
    A.label("L_fin")
    if stamp:
        A("""
        s_cmp_lg_u32 s35, 0
        s_cbranch_scc1 L_end
        s_waitcnt vmcnt(0)
        s_memrealtime s[66:67]
        s_waitcnt lgkmcnt(0)
        v_mov_b32 v20, s60
        v_mov_b32 v21, s62
        v_mov_b32 v22, s64
        v_mov_b32 v23, s66
        s_lshl_b32 s65, s2, 6
        s_add_u32 s65, s65, 0x200010
        v_mov_b32 v24, s65
        s_mov_b64 exec, 1
        global_store_dwordx4 v24, v[20:23], s[32:33]
        """)
    A.label("L_end")
    A("s_endpgm")
    A.raw('.section .rodata,"a"'); A.raw(".p2align 6"); A.raw(".amdhsa_kernel " + KN)
    A.raw("  .amdhsa_next_free_vgpr %d" % NV); A.raw("  .amdhsa_next_free_sgpr 102"); A.raw("  .amdhsa_accum_offset %d" % NV)
    A.raw("  .amdhsa_group_segment_fixed_size 0"); A.raw("  .amdhsa_kernarg_size 104"); A.raw("  .amdhsa_user_sgpr_count 2")
    A.raw("  .amdhsa_user_sgpr_kernarg_segment_ptr 1"); A.raw("  .amdhsa_system_sgpr_workgroup_id_x 1")
    A.raw("  .amdhsa_float_denorm_mode_32 3")
    A.raw(".end_amdhsa_kernel")
    open(out, "w").write(A.text())

if __name__ == "__main__":
    gen()
```

```python
import sys, struct
sys.path.insert(0, "gen")
from asmlib import Asm

KN = "recurrent_scan__gqa_block_cached__mixer_token_mlp__decode_kernel"
def f32(x): return "0x%08x" % struct.unpack("<I", struct.pack("<f", x))[0]
HDR = open("recurrent_scan__gqa_block_cached__mixer_token_mlp__decode.s.ref").read().split("; Override launch")[0]

RING = 0
SC   = 131072
XNP  = SC
QP   = SC + 16384
QB   = QP + 4096
FL   = QB + 256
GY   = FL + 256
HB   = GY + 2048
LDS_TOTAL = HB + 2560 + 64
F_FULL, F_BAR0, F_BAR1, F_NONCE, F_XRDY, F_LV, F_FREE, F_MX = 0, 4, 8, 12, 16, 20, 64, 128
WS_PART = 0
WS_CT = 0x140000
WS_SIZE = 0x140000
GX = QB
INB = 24576
NX = 0x9e3779b9

OUT = "recurrent_scan__gqa_block_cached__mixer_token_mlp__decode.s"

def gen(DS=(19, 20, 21, 22, 23, 25, 27), LMID=2, GSH=7, P=32, DEL=16, CP0=44,
        stamp=0, ctl=True, ABL='', fine=True, OSC='', SPR=0, SPB=120, SPADD=0, GCP=11, CSC='sc1', XDEL=0, DWG=99, POL='nt', QPOL='', OPOL='', WQD=2, NA=8, CHK=(4, 7, 10, 13, 16), WQ0=4, WQN=99, WQD2=3, ORD=0, REH=0, FRESH=1, XTR=0, ACKW=1, T0N=1, KI=0, ICL=512, KD=0, GM=0, WOROT=1, XPOL='', GPOL='', LAY=1, PSL=0, NPOLL=1, PST=3, LSC='sc1', SSC='sc1', out=OUT):
    A = Asm()
    A.raw(HDR.rstrip())
    A.raw("; @launch grid=(256,1,1) block=(640,1,1) lds=%d" % LDS_TOTAL)
    if stamp and stamp != 4: A.raw("; STAMP3")
    for line in """
; Generated by gen/gen_v12.py (own generator script).
; One workgroup per (batch b, head h); 10 waves:
;   wave 0     streams K then V (2 MiB) through a 128 KiB LDS ring with LDS-DMA nt loads, a bounded number in flight
;   wave 1     both layernorms, then the balancer: 8 reference workgroups publish when they pass each checkpoint and
;              every workgroup picks its prefetch depth from its lead/lag, so that all streams end together; it also
;              finishes the gate (silu) for this workgroup's 20 output columns
;   waves 2-9  q = xn.Wq (MFMA), scores (MFMA), gate MLP for 20 columns, exact softmax (true max), P.V (MFMA),
;              o.Wo (MFMA), then an all-to-all exchange of per-head partial rows through d_ws (16-byte granules that
;              carry check words derived from a per-launch nonce kept in d_debug) and the final x + s*g.
""".strip().split("\n"): A.raw(line)
    A.raw('.amdgcn_target "amdgcn-amd-amdhsa--gfx950"')
    A.raw(".text"); A.raw(".globl " + KN); A.raw(".p2align 8"); A.raw(".type %s,@function" % KN)
    A.label(KN)
    VST = 165
    LOADER = [True]
    def ST(k):
        if stamp == 4 and not LOADER[0]: return
        if stamp:
            A("s_memrealtime s[98:99]")
            A("s_waitcnt lgkmcnt(0)")
            A("v_writelane_b32 v%d, s98, %d" % (VST, k))
    def STORE_ST():
        if stamp == 4:
            if LOADER[0]:
                A("""
                s_cmp_lg_u32 s2, %d
                s_cbranch_scc1 L_nodbg
                s_mov_b64 exec, -1
                s_load_dwordx2 s[32:33], s[0:1], 88
                v_readlane_b32 s98, v%d, 0
                v_cmp_lt_u32 vcc, 6, v0
                v_cndmask_b32 v25, 1, 2, vcc
                v_add_u32 v24, v25, v0
                v_lshlrev_b32 v24, 2, v24
                v_subrev_u32 v25, s98, v%d
                s_waitcnt lgkmcnt(0)
                s_mov_b64 exec, 0x3fff
                global_store_dword v24, v25, s[32:33]
                L_nodbg:
                """ % (DWG, VST, VST))
                LOADER[0] = False
            return
        if stamp:
            A("""
            s_mov_b64 exec, -1
            s_load_dwordx2 s[32:33], s[0:1], 96
            s_getreg_b32 s98, hwreg(HW_REG_XCC_ID)
            v_writelane_b32 v%d, s98, 15
            s_mul_i32 s64, s2, 10
            s_add_u32 s64, s64, s34
            s_lshl_b32 s64, s64, 6
            s_add_u32 s64, s64, 0x200000
            v_and_b32 v24, 63, v0
            v_lshl_add_u32 v24, v24, 2, s64
            s_waitcnt lgkmcnt(0)
            s_mov_b64 exec, 0xffff
            global_store_dword v24, v%d, s[32:33]
            """ % (VST, VST))
    A("""
    s_load_dwordx4 s[4:7], s[0:1], 8
    s_cmp_ge_u32 s2, 256
    s_cbranch_scc1 L_end
    v_lshrrev_b32 v1, 6, v0
    s_and_b32 s3, s2, 7
    s_lshr_b32 s36, s2, 3
    v_readfirstlane_b32 s34, v1
    s_and_b32 s37, s36, 3
    s_lshl_b32 s3, s3, 2
    s_add_u32 s37, s37, s3
    s_lshr_b32 s36, s36, 2
    s_lshl_b32 s38, s36, 5
    s_add_u32 s38, s38, s37
    s_cmp_eq_u32 s34, 0
    s_cbranch_scc1 L_loader
    s_load_dwordx16 s[8:23], s[0:1], 0
    s_load_dwordx8 s[24:31], s[0:1], 64
    s_load_dwordx2 s[32:33], s[0:1], 96
    s_sub_u32 s35, s34, 2
    v_and_b32 v1, 63, v0
    v_lshrrev_b32 v2, 4, v1
    v_and_b32 v3, 15, v1
    s_cmp_eq_u32 s34, 1
    s_barrier
    s_cbranch_scc1 L_ln
    s_branch L_worker2
    """)
    A.label("L_loader")
    A("s_setprio 3")
    if stamp: A("v_mov_b32 v%d, 0" % VST)
    ST(0)
    A("""
    v_lshrrev_b32 v2, 4, v0
    v_and_b32 v3, 15, v0
    v_xor_b32 v3, v3, v2
    v_lshlrev_b32 v2, 8, v2
    v_lshl_add_u32 v4, v3, 4, v2
    v_xor_b32 v5, 64, v4
    v_xor_b32 v6, 0x80, v4
    v_xor_b32 v7, 0xc0, v4
    v_lshlrev_b32 v10, 2, v0
    v_add_u32 v10, {FL}, v10
    v_mov_b32 v9, 0
    ds_write_b32 v10, v9
    s_lshl_b32 s39, s38, 20
    s_mov_b32 s42, 0x100000
    s_mov_b32 s43, 0x20000
    s_mov_b32 s45, 0
    s_mov_b32 m0, 0
    v_mov_b32 v10, {FL}
    v_mov_b32 v8, 0
    v_mov_b32 v12, 0
    v_mov_b32 v11, {FREE}
    s_mov_b32 s44, 0
    s_mov_b32 s50, 0
    s_mov_b32 s51, 0
    s_waitcnt lgkmcnt(0)
    s_add_u32 s40, s4, s39
    s_addc_u32 s41, s5, 0
    s_add_u32 s6, s6, s39
    s_addc_u32 s7, s7, 0
    """.format(FL=FL, FREE=FL + F_FREE))
    def ld(t): return "buffer_load_dwordx4 v%d, s[40:43], s45 offen offset:%d %s lds" % (4 + t, t * 1024, POL)
    for t in range(4): A(ld(t))
    A("""
    s_movk_i32 s45, 0x1000
    s_mov_b32 m0, s45
    s_mov_b32 s50, 1
    s_barrier
    """)
    if T0N > 1:
        assert T0N % 4 != 0
        A("""
        L_ld0:
        %s
        s_add_u32 s45, s45, 0x1000
        s_mov_b32 m0, s45
        s_add_u32 s50, s50, 1
        s_cmp_lt_u32 s50, %d
        s_cbranch_scc1 L_ld0
        s_mov_b32 s44, %d
        """ % ("\n".join(ld(t) for t in range(4)), T0N, T0N // 4))
    NL = NLC = len(DS)
    def body(lv):
        D = DS[lv]
        A.label("L_ldb%d" % lv)
        for t in range(4):
            A("s_waitcnt vmcnt(%d)" % (D - 1))
            A(ld(t))
            if FRESH and t == 1:
                A("ds_read_b32 v8, v11")
                A("ds_read_b32 v12, v10 offset:%d" % F_LV)
            if (t - D + 1) % 4 == 0:
                A("""
                s_add_i32 s47, s50, %d
                s_max_i32 s51, s51, s47
                s_mov_b64 exec, 1
                v_mov_b32 v9, s51
                ds_write_b32 v10, v9 offset:%d
                s_mov_b64 exec, -1
                """ % ((t - D + 1) // 4, F_FULL))
        A("""
        s_add_u32 s45, s45, 0x1000
        s_and_b32 m0, s45, 0x1ffff
        s_add_u32 s50, s50, 1
        s_and_b32 s47, s50, 3
        s_cbranch_scc1 L_ldb%d
        """ % lv)
    def tree(lo, hi):
        if hi - lo == 1:
            A("s_branch L_ldb%d" % lo); return
        mid = (lo + hi) // 2
        lab = A.newlabel("L_tr")
        A("s_cmp_ge_u32 s49, %d" % mid)
        if hi - mid == 1:
            A("s_cbranch_scc1 L_ldb%d" % mid)
            tree(lo, mid)
        else:
            A("s_cbranch_scc1 %s" % lab)
            tree(lo, mid)
            A.label(lab)
            tree(mid, hi)
    body(LMID)
    A.label("L_ld_bot")
    A("""
    s_add_u32 s44, s44, 1
    s_cmp_lg_u32 s44, 64
    s_cbranch_scc1 L_ld_nosw
    s_mov_b32 s40, s6
    s_mov_b32 s41, s7
    s_mov_b32 s45, 0
    L_ld_nosw:
    s_cmp_ge_u32 s44, 128
    s_cbranch_scc1 L_ld_drain
    """)
    if stamp in (2, 4):
        for k, bb in enumerate([2, 4, 6, 8, 12, 16, 32, 64, 66, 68, 72, 96]):
            A("s_cmp_lg_u32 s44, %d" % bb)
            A("s_cbranch_scc1 L_ld_st%d" % k)
            ST(2 + k)
            A.label("L_ld_st%d" % k)
    A("""
    L_ld:
    s_waitcnt lgkmcnt(0)
    v_readfirstlane_b32 s46, v8
    v_readfirstlane_b32 s49, v12
    s_lshr_b32 s47, s44, 3
    s_cmp_ge_u32 s46, s47
    s_cbranch_scc1 L_ld_go
    s_sleep 1
    ds_read_b32 v8, v11
    s_branch L_ld
    L_ld_go:
    s_add_u32 s47, s44, 1
    s_and_b32 s47, s47, 7
    s_lshl_b32 s47, s47, 2
    s_add_u32 s47, s47, {FREE}
    v_mov_b32 v11, s47
    {rd}
    s_cmp_eq_u32 s49, 0
    s_cbranch_scc1 L_ldb{m}
    s_xor_b32 s49, s49, {m}
    """.format(FREE=FL + F_FREE, m=LMID, rd=("" if FRESH else "ds_read_b32 v8, v11\nds_read_b32 v12, v10 offset:%d" % F_LV)))
    tree(0, NL)
    for lv in range(NL):
        if lv == LMID: continue
        body(lv)
        A("s_branch L_ld_bot")
    A.label("L_ld_drain")
    A("s_mov_b64 exec, 1")
    ntl = (max(DS) + 3) // 4
    for k in range(ntl - 1, -1, -1):
        A("s_waitcnt vmcnt(%d)" % (4 * k))
        A("s_max_i32 s51, s51, 0x%x" % (512 - k))
        A("v_mov_b32 v9, s51")
        A("ds_write_b32 v10, v9 offset:%d" % F_FULL)
    ST(1)
    STORE_ST()
    A("s_waitcnt lgkmcnt(0)")
    A("s_endpgm")

    M = [4, 5, 6, 7]
    AD = [8, 9, 10, 11]
    VFL, VFREE, VSC, T0 = 12, 13, 14, 15
    QA = 16
    DK = 32
    GT = 48
    W = 64
    AT = 144
    ACC = 152
    VMAX, VH, VGA, VC1, VT1, VT2, VONE, VQPW = 156, 157, 158, 159, 160, 161, 162, 163
    NV = 168 if stamp else 164
    def q(r): return "v[%d:%d]" % (r, r + 3)
    def d2(r): return "v[%d:%d]" % (r, r + 1)
    def wave_red(op, v, sdst):
        A("""
        {op}_dpp v{v}, v{v}, v{v} quad_perm:[1,0,3,2] row_mask:0xf bank_mask:0xf
        {op}_dpp v{v}, v{v}, v{v} quad_perm:[2,3,0,1] row_mask:0xf bank_mask:0xf
        {op}_dpp v{v}, v{v}, v{v} row_half_mirror row_mask:0xf bank_mask:0xf
        {op}_dpp v{v}, v{v}, v{v} row_mirror row_mask:0xf bank_mask:0xf
        {op}_dpp v{v}, v{v}, v{v} row_bcast:15 row_mask:0xa bank_mask:0xf
        {op}_dpp v{v}, v{v}, v{v} row_bcast:31 row_mask:0xc bank_mask:0xf
        v_readlane_b32 s{s}, v{v}, 63
        """.format(op=op, v=v, s=sdst))
    def rbf(dst, src):
        A("v_cvt_pk_bf16_f32 v%d, v%d, v%d" % (dst, src, src))
        A("v_and_b32 v%d, 0xffff0000, v%d" % (dst, dst))
    def cbar(off, tgt=8):
        lab = A.newlabel("L_bar")
        A("""
        s_waitcnt lgkmcnt(0)
        s_mov_b64 exec, 1
        ds_add_u32 v{fl}, v{one} offset:{off}
        s_mov_b64 exec, -1
        {lab}:
        ds_read_b32 v{t}, v{fl} offset:{off}
        s_waitcnt lgkmcnt(0)
        v_readfirstlane_b32 s50, v{t}
        s_cmp_lt_u32 s50, {tgt}
        s_cbranch_scc1 {lab}
        """.format(fl=VFL, one=VONE, off=off, lab=lab, t=T0, tgt=tgt))
    def wait_full(sneed, sleep=1):
        lab = A.newlabel("L_wf"); dn = A.newlabel("L_wfd")
        A("""
        {lab}:
        ds_read_b32 v{t}, v{fl} offset:{off}
        s_waitcnt lgkmcnt(0)
        v_readfirstlane_b32 s50, v{t}
        s_cmp_ge_u32 s50, s{need}
        """.format(lab=lab, t=T0, fl=VFL, off=F_FULL, need=sneed))
        if sleep:
            A("s_cbranch_scc1 %s\ns_sleep %d\ns_branch %s\n%s:" % (dn, sleep, lab, dn))
        else:
            A("s_cbranch_scc0 %s" % lab)
    def layernorm_stats(xs, sm, ssd, tmp, tmp2):
        A("v_add_f32 v%d, v%d, v%d" % (tmp, xs[0], xs[1]))
        for x in xs[2:]: A("v_add_f32 v%d, v%d, v%d" % (tmp, tmp, x))
        wave_red("v_add_f32", tmp, 51)
        A("v_mov_b32 v%d, %s" % (tmp2, f32(1.0 / 640)))
        A("v_mul_f32 v%d, s51, v%d" % (tmp2, tmp2))
        first = True
        for x in xs:
            A("v_sub_f32 v%d, v%d, v%d" % (VT1, x, tmp2))
            if first: A("v_mul_f32 v%d, v%d, v%d" % (tmp, VT1, VT1)); first = False
            else: A("v_fmac_f32 v%d, v%d, v%d" % (tmp, VT1, VT1))
        wave_red("v_add_f32", tmp, 51)
        rbf(tmp2, tmp2)
        A("v_readfirstlane_b32 s%d, v%d" % (sm, tmp2))
        A("v_mov_b32 v%d, %s" % (tmp, f32(1.0 / 640)))
        A("v_mul_f32 v%d, s51, v%d" % (tmp, tmp))
        rbf(tmp, tmp)
        A("v_add_f32 v%d, %s, v%d" % (tmp, f32(1e-5), tmp))
        rbf(tmp, tmp)
        A("v_sqrt_f32 v%d, v%d" % (tmp, tmp))
        rbf(tmp, tmp)
        A("v_readfirstlane_b32 s%d, v%d" % (ssd, tmp))
    def norm_apply(dst, x, sm, vsd, vrcp):
        A("v_subrev_f32 v%d, s%d, v%d" % (VT1, sm, x))
        rbf(VT1, VT1)
        A("v_mul_f32 v%d, v%d, v%d" % (VT2, VT1, vrcp))
        A("v_fma_f32 v%d, -v%d, v%d, v%d" % (VT1, VT2, vsd, VT1))
        A("v_fmac_f32 v%d, v%d, v%d" % (VT2, VT1, vrcp))
        rbf(dst, VT2)

    A.label("L_ln")
    A("""
    v_mov_b32 v{one}, 1
    v_mov_b32 v{fl}, {FL}
    """.format(one=VONE, fl=VFL, FL=FL))
    if stamp: A("v_mov_b32 v%d, 0" % VST)
    ST(0)
    A("""
    v_lshlrev_b32 v37, 2, v1
    s_mul_i32 s55, s36, 1280
    s_mov_b32 s42, 10240
    s_mov_b32 s43, 0x20000
    s_waitcnt lgkmcnt(0)
    s_mov_b32 s40, s8
    s_mov_b32 s41, s9
    """)
    XR = 39
    for k in range(5):
        A("buffer_load_dword v%d, v37, s[40:43], s55 offen offset:%d %s" % (XR + k, 256 * k, XPOL))
    A("""
    s_lshl_b32 s57, s36, 5
    v_mov_b32 v30, s57
    s_cmp_lg_u32 s37, 0
    s_cbranch_scc1 L_nononce
    s_memrealtime s[62:63]
    s_waitcnt lgkmcnt(0)
    s_or_b32 s62, s62, 1
    v_mov_b32 v28, s62
    s_mov_b64 exec, 1
    global_store_dword v30, v28, s[30:31] sc1
    s_mov_b64 exec, -1
    L_nononce:
    """)
    A("v_lshlrev_b32 v37, 3, v1")
    A("v_add_u32 v38, %d, v37" % HB)
    A("v_add_u32 v37, %d, v37" % XNP)
    A("s_waitcnt vmcnt(0)")
    ST(2)
    XF = list(range(45, 55))
    XN = list(range(56, 66))
    for k in range(5):
        A("v_lshlrev_b32 v%d, 16, v%d" % (XF[2 * k], XR + k))
        A("v_and_b32 v%d, 0xffff0000, v%d" % (XF[2 * k + 1], XR + k))
    layernorm_stats(XF, 58, 59, 33, 34)
    A("v_mov_b32 v33, s59")
    A("v_rcp_f32 v34, v33")
    for k in range(10): norm_apply(XN[k], XF[k], 58, 33, 34)
    for k in range(5):
        A("v_cvt_pk_bf16_f32 v40, v%d, v%d" % (XN[2 * k], XN[2 * k]))
        A("v_cvt_pk_bf16_f32 v41, v%d, v%d" % (XN[2 * k + 1], XN[2 * k + 1]))
        A("ds_write_b64 v37, v[40:41] offset:%d" % (512 * k))
        A("ds_write_b64 v37, v[40:41] offset:%d" % (512 * k + 2560))
    A("""
    s_waitcnt lgkmcnt(0)
    s_mov_b64 exec, 1
    ds_write_b32 v{fl}, v{one} offset:{x}
    s_mov_b64 exec, -1
    """.format(fl=VFL, one=VONE, x=F_XRDY))
    ST(3)
    layernorm_stats(XN, 58, 59, 33, 34)
    A("v_mov_b32 v33, s59")
    A("v_rcp_f32 v34, v33")
    for k in range(10): norm_apply(XN[k], XN[k], 58, 33, 34)
    for k in range(5):
        A("ds_write_b64 v38, v[%d:%d] offset:%d" % (XN[2 * k], XN[2 * k] + 1, 512 * k))
    A("""
    s_waitcnt lgkmcnt(0)
    s_mov_b64 exec, 1
    ds_add_u32 v{fl}, v{one} offset:{b}
    """.format(fl=VFL, one=VONE, b=F_BAR0))
    ST(4)
    if ctl:
        ncp = (512 - 16 - DEL - CP0) // P + 1
        A("""
        s_mov_b64 exec, -1
        s_mov_b32 s52, {cp0}
        s_mov_b32 s53, 0
        s_mov_b32 s54, 0
        s_mov_b32 s80, 0
        s_and_b32 s57, s2, 7
        v_cmp_eq_u32 s[68:69], s57, v1
        s_mul_i32 s57, s57, 33
        v_lshlrev_b32 v24, 2, v1
        v_add_u32 v24, {ct}, v24
        v_mov_b32 v26, 4000
        L_ctl:
        """.format(cp0=CP0, ct=WS_CT))
        wait_full(52, sleep=1)
        A("""
        s_memrealtime s[58:59]
        s_add_u32 s52, s52, {dl}
        s_cmp_lg_u32 s57, s2
        s_waitcnt lgkmcnt(0)
        s_cbranch_scc1 L_ctl_nw
        v_mov_b32 v21, s58
        s_mov_b64 exec, s[68:69]
        global_store_dword v24, v21, s[32:33] sc1
        s_mov_b64 exec, -1
        L_ctl_nw:
        """.format(dl=DEL))
        wait_full(52, sleep=2)
        A("""
        s_mov_b64 exec, 0xff
        global_load_dword v22, v24, s[32:33] {csc}
        s_memrealtime s[60:61]
        s_waitcnt lgkmcnt(0)
        s_sub_u32 s60, s60, s58
        v_mov_b32 v25, s60
        s_waitcnt vmcnt(0)
        v_subrev_u32 v22, s58, v22
        v_add_u32 v21, 2000, v22
        v_cmp_gt_u32 vcc, v26, v21
        v_cndmask_b32 v22, v25, v22, vcc
        v_add_u32_dpp v22, v22, v22 quad_perm:[1,0,3,2] row_mask:0xf bank_mask:0xf
        v_add_u32_dpp v22, v22, v22 quad_perm:[2,3,0,1] row_mask:0xf bank_mask:0xf
        v_add_u32_dpp v22, v22, v22 row_half_mirror row_mask:0xf bank_mask:0xf
        s_lshl_b32 s78, s58, 3
        v_readfirstlane_b32 s58, v22
        {xtr}
        {integ}
        s_add_i32 s58, s58, {rnd}
        s_ashr_i32 s58, s58, {gsh}
        s_sub_i32 s58, {lmid}, s58
        s_max_i32 s58, s58, 0
        s_min_i32 s58, s58, {lmax}
        s_xor_b32 s58, s58, {lmid}
        v_mov_b32 v21, s58
        s_mov_b64 exec, 1
        ds_write_b32 v{fl}, v21 offset:{lv}
        s_mov_b64 exec, -1
        v_add_u32 v24, {ks}, v24
        s_add_u32 s52, s52, {rest}
        s_add_u32 s53, s53, 1
        s_cmp_eq_u32 s53, {gcp}
        s_cbranch_scc1 L_gate
        L_gate_ret:
        s_cmp_lt_u32 s53, {ncp}
        s_cbranch_scc1 L_ctl
        """.format(xtr=(("s_add_u32 s78, s78, s58\ns_sub_u32 s79, s78, s80\ns_mov_b32 s80, s78\ns_lshr_b32 s79, s79, 1\ns_lshl_b32 s60, s60, 3\ns_sub_i32 s79, s79, s60\ns_ashr_i32 s79, s79, %d\ns_cmp_eq_u32 s53, 0\ns_cselect_b32 s79, 0, s79\ns_add_i32 s58, s58, s79" % (XTR - 1)) if XTR else ""), integ=(("s_sub_i32 s59, s58, s54\ns_mov_b32 s54, s58\ns_cmp_eq_u32 s53, 0\ns_cselect_b32 s59, 0, s59\ns_ashr_i32 s59, s59, %d\ns_add_i32 s58, s58, s59\n" % KD if KD else "") + ("s_mul_i32 s58, s58, %d" % GM if GM else "")) if not KI else ("" if not KI else "s_ashr_i32 s59, s58, %d\ns_add_i32 s58, s58, s54\ns_add_i32 s54, s54, s59\ns_max_i32 s54, s54, %d\ns_min_i32 s54, s54, %d" % (KI, -ICL, ICL)), csc=CSC, gcp=GCP, rnd=(1 << GSH) // 2, gsh=GSH, lmid=LMID, lmax=NLC - 1, fl=VFL, lv=F_LV, ks=4352, rest=P - DEL, ncp=ncp))
    STORE_ST()
    A("s_waitcnt lgkmcnt(0)")
    A("s_endpgm")
    A.label("L_gate")
    A("""
    s_mul_i32 s60, s37, 40
    v_lshl_add_u32 v43, v1, 2, s60
    v_lshlrev_b32 v40, 3, v1
    v_add_u32 v41, {gy}, v40
    s_load_dword s64, s[26:27], 0
    s_mov_b64 exec, 0x3ff
    buffer_load_dword v50, v43, s[40:43], s55 offen
    """.format(gy=GY))
    for w in range(8):
        A("ds_read_b64 %s, v41 offset:%d" % (d2(52 + 2 * w), 256 * w))
    A("s_waitcnt vmcnt(0) lgkmcnt(0)")
    A("v_add_f32 v44, v52, v54")
    A("v_add_f32 v45, v53, v55")
    for w in range(2, 8):
        A("v_add_f32 v44, v44, v%d" % (52 + 2 * w))
        A("v_add_f32 v45, v45, v%d" % (53 + 2 * w))
    A("""
    s_waitcnt lgkmcnt(0)
    s_lshl_b32 s64, s64, 16
    s_mov_b32 s65, {nl2e}
    v_cvt_pk_bf16_f32 v44, v44, v45
    v_and_b32 v45, 0xffff0000, v44
    v_lshlrev_b32 v44, 16, v44
    v_add_f32 v44, s64, v44
    v_add_f32 v45, s64, v45
    v_cvt_pk_bf16_f32 v44, v44, v45
    v_and_b32 v45, 0xffff0000, v44
    v_lshlrev_b32 v44, 16, v44
    v_mul_f32 v46, s65, v44
    v_mul_f32 v47, s65, v45
    v_exp_f32 v46, v46
    v_exp_f32 v47, v47
    v_add_f32 v46, 1.0, v46
    v_add_f32 v47, 1.0, v47
    v_rcp_f32 v46, v46
    v_rcp_f32 v47, v47
    v_mul_f32 v44, v44, v46
    v_mul_f32 v45, v45, v47
    v_cvt_pk_bf16_f32 v44, v44, v45
    v_and_b32 v45, 0xffff0000, v44
    v_lshlrev_b32 v44, 16, v44
    v_and_b32 v47, 0xffff0000, v50
    v_lshlrev_b32 v46, 16, v50
    v_add_u32 v40, {gx}, v40
    ds_write_b64 v40, v[44:45]
    ds_write_b64 v40, v[46:47] offset:128
    s_mov_b64 exec, 1
    s_mov_b32 s65, 0
    L_npoll:
    global_load_dword v31, v30, s[30:31] sc1
    s_waitcnt vmcnt(0)
    v_readfirstlane_b32 s62, v31
    s_add_u32 s65, s65, 1
    s_cmp_ge_u32 s65, 0x20000
    s_cbranch_scc1 L_ndone
    s_cmp_eq_u32 s62, 0
    s_cbranch_scc1 L_npoll
    L_ndone:
    ds_write_b32 v{fl}, v31 offset:{n}
    s_mov_b64 exec, -1
    s_branch L_gate_ret
    """.format(nl2e=f32(-1.4426950408889634), gx=GX, fl=VFL, n=F_NONCE))
    A.label("L_worker2")
    if stamp: A("v_mov_b32 v%d, 0" % VST)
    ST(0)
    A("""
    v_lshlrev_b32 v36, 13, v2
    v_lshl_add_u32 v36, v3, 4, v36
    s_lshl_b32 s57, s37, 8
    v_add_u32 v36, s57, v36
    s_mul_i32 s60, s36, 20
    s_add_u32 s60, s60, s35
    s_lshl_b32 s56, s60, 15
    s_mov_b32 s46, {wqsz}
    s_mov_b32 s47, 0x20000
    s_waitcnt lgkmcnt(0)
    s_mov_b32 s44, s14
    s_mov_b32 s45, s15
    """.format(wqsz=640 * 8192))
    def consts():
        A("""
        v_mov_b32 v{one}, 1
        v_mov_b32 v{fl}, {FL}
        s_mov_b32 s43, 0x20000
        s_lshl_b32 s57, s35, 2
        s_add_u32 s48, s57, 4
        s_add_u32 s57, s57, {FREE}
        v_mov_b32 v{free}, s57
        v_lshrrev_b32 v38, 1, v3
        v_and_b32 v39, 1, v3
        v_mov_b32 v{t1}, 0xffff
        v_mov_b32 v{t2}, 0xffff0000
        v_cmp_eq_u32 vcc, 1, v39
        v_cndmask_b32 v{t1}, v{t1}, v{t2}, vcc
        """.format(FREE=FL + F_FREE, free=VFREE, t1=VT1, t2=VT2, one=VONE, fl=VFL, FL=FL))
        for r in range(4):
            A("v_cmp_eq_u32 vcc, %d, v38" % r)
            A("v_cndmask_b32 v%d, 0, v%d, vcc" % (M[r], VT1))
        for k in range(1, 4):
            A("v_cmp_eq_u32 s[%d:%d], %d, v2" % (64 + 2 * k, 65 + 2 * k, k))
        A("""
        s_lshl_b32 s57, s35, 14
        v_xor_b32 v38, v2, v3
        v_lshlrev_b32 v38, 4, v38
        v_lshl_add_u32 v38, v3, 8, v38
        v_add_u32 v{a0}, s57, v38
        v_xor_b32 v{a1}, 64, v{a0}
        v_xor_b32 v{a2}, 0x80, v{a0}
        v_xor_b32 v{a3}, 0xc0, v{a0}
        s_lshl_b32 s57, s60, 4
        s_add_u32 s57, s57, {xnp}
        v_lshl_add_u32 v37, v2, 2, s57
        s_mov_b32 s61, 0
        """.format(a0=AD[0], a1=AD[1], a2=AD[2], a3=AD[3], xnp=XNP))
    SL = [W + 64, W + 68, W + 72, W + 76, 40, 44, 48, 52, 56, 60]
    def drain_check():
        sk = A.newlabel("L_dr")
        A("""
        s_cmp_lg_u32 s61, 0
        s_cbranch_scc1 {sk}
        ds_read_b32 v{t}, v{fl} offset:{full}
        s_waitcnt lgkmcnt(0)
        v_readfirstlane_b32 s50, v{t}
        s_cmp_ge_u32 s50, s48
        s_cbranch_scc0 {sk}
        """.format(sk=sk, t=T0, fl=VFL, full=F_FULL))
        for tau in range(4):
            for s_ in range(4):
                A("ds_read_b128 %s, v%d offset:%d" % (q(W + 16 * tau + 4 * s_), AD[s_], 4096 * tau))
        A("""
        s_mov_b32 s61, 1
        s_waitcnt lgkmcnt(0)
        s_mov_b64 exec, 1
        ds_write_b32 v{free}, v{one}
        s_mov_b64 exec, -1
        {sk}:
        """.format(sk=sk, free=VFREE, one=VONE))
    def wq_issue(n):
        if n >= max(WQD, WQ0): A("s_waitcnt vmcnt(%d)" % ((WQD if n < WQN else WQD2) - 1))
        if 'q' not in ABL: A("buffer_load_dwordx4 %s, v36, s[44:47], s56 offen %s" % (q(SL[n % 10]), QPOL))
        if n < 19:
            A("s_add_u32 s56, s56, 0x40000")
            A("s_sub_u32 s57, s56, 0x500000")
            A("s_min_u32 s56, s56, s57")
        if n == max(WQD, WQ0) - 1: consts()
        if n in CHK: drain_check()
    for n in range(NA): wq_issue(n)
    ST(1)
    A("""
    L_wx:
    ds_read_b32 v{t}, v{fl} offset:{x}
    s_waitcnt lgkmcnt(0)
    v_readfirstlane_b32 s50, v{t}
    s_cmp_eq_u32 s50, 0
    s_cbranch_scc1 L_wx
    """.format(t=T0, fl=VFL, x=F_XRDY))
    ST(2)
    for u in range(0, 20, 2):
        A("ds_read2_b32 %s, v37 offset0:%d offset1:%d" % (d2(QA + u), 32 * u, 32 * (u + 1)) if 32 * (u + 1) < 256 else
          "ds_read_b32 v%d, v37 offset:%d\nds_read_b32 v%d, v37 offset:%d" % (QA + u, 128 * u, QA + u + 1, 128 * (u + 1)))
    A("s_waitcnt lgkmcnt(0)")
    ST(3)
    for u in range(20):
        at = AT + 4 * (u % 2)
        for r in range(4): A("v_and_b32 v%d, v%d, v%d" % (at + r, QA + u, M[r]))
        A("s_waitcnt vmcnt(%d)" % (min(20, NA + u) - (u + 1)))
        A("v_mfma_f32_16x16x32_bf16 %s, %s, %s, %s" % (q(ACC), q(at), q(SL[u % 10]), "0" if u == 0 else q(ACC)))
        if NA + u < 20: wq_issue(NA + u)
    A("""
    s_lshl_b32 s57, s35, 9
    s_add_u32 s57, s57, {QP}
    v_lshlrev_b32 v36, 5, v3
    v_lshl_add_u32 v36, v2, 4, v36
    v_add_u32 v{qpw}, s57, v36
    s_mov_b32 exec_hi, 0
    ds_write_b128 v{qpw}, {acc}
    s_mov_b64 exec, -1
    """.format(QP=QP, acc=q(ACC), qpw=VQPW))
    ST(4)
    A("""
    s_waitcnt lgkmcnt(0)
    s_mov_b64 exec, 1
    ds_add_u32 v{fl}, v{one} offset:{off}
    s_mov_b64 exec, -1
    L_bar0:
    """.format(fl=VFL, one=VONE, off=F_BAR0))
    drain_check()
    A("""
    ds_read_b32 v{t}, v{fl} offset:{off}
    s_waitcnt lgkmcnt(0)
    v_readfirstlane_b32 s50, v{t}
    s_cmp_lt_u32 s50, 9
    s_cbranch_scc1 L_bar0
    """.format(fl=VFL, off=F_BAR0, t=T0))
    GW = W + 64
    A("""
    s_mul_i32 s57, s35, 432
    v_lshl_add_u32 v38, v1, 3, s57
    v_cmp_gt_u32 vcc, 54, v1
    v_mov_b32 v39, 0x10000
    v_cndmask_b32 v38, v39, v38, vcc
    s_mov_b32 s42, 3456
    s_mov_b32 s40, s20
    s_mov_b32 s41, s21
    buffer_load_dwordx2 {r0}, v38, s[40:43], 0 offen {gp}
    s_mov_b32 s46, 3456
    s_mov_b32 s44, s22
    s_mov_b32 s45, s23
    buffer_load_dwordx2 {r1}, v38, s[44:47], 0 offen {gp}
    s_mov_b32 s74, 3456
    s_mov_b32 s72, s24
    s_mov_b32 s73, s25
    s_mov_b32 s75, 0x20000
    buffer_load_dwordx2 {r2}, v38, s[72:75], 0 offen {gp}
    s_mul_i32 s57, s37, 80
    s_add_u32 s57, s57, {hb}
    v_mov_b32 v{vh}, s57
    s_lshl_b32 s57, s35, 8
    s_add_u32 s57, s57, {gy}
    v_mov_b32 v{vga}, s57
    """.format(r0=d2(GW + 10), r1=d2(GW + 12), r2=d2(GW + 8), gp=GPOL, hb=HB, vh=VH, gy=GY, vga=VGA))
    A("v_lshlrev_b32 v37, 3, v1")
    A("v_add_u32 v37, %d, v37" % QP)
    for w in range(8):
        A("ds_read_b64 %s, v37 offset:%d" % (d2(40 + 2 * w), 512 * w))
    A("""
    v_and_b32 v38, 48, v1
    v_and_b32 v39, 3, v1
    v_lshl_add_u32 v38, v39, 2, v38
    v_bfe_u32 v39, v1, 2, 2
    v_add_u32 v38, v38, v39
    s_lshl_b32 s57, s35, 11
    s_add_u32 s57, s57, {SC}
    v_lshl_add_u32 v{vsc}, v38, 2, s57
    v_mov_b32 v{vmax}, 0xff800000
    v_mov_b32 v{vc1}, {c1}
    s_waitcnt lgkmcnt(0)
    """.format(SC=SC, vsc=VSC, vmax=VMAX, vga=VGA, vc1=VC1,
               c1=f32(-2.0 * 0.7978845608028654 * 1.4426950408889634 * 0.044715)))
    for w in range(1, 8):
        A("v_add_f32 v40, v40, v%d" % (40 + 2 * w))
        A("v_add_f32 v41, v41, v%d" % (41 + 2 * w))
    A("""
    v_cvt_pk_bf16_f32 v40, v40, v41
    v_lshlrev_b32 v37, 2, v1
    v_add_u32 v37, {QB}, v37
    ds_write_b32 v37, v40
    v_lshlrev_b32 v37, 4, v2
    v_add_u32 v37, {QB}, v37
    s_waitcnt lgkmcnt(0)
    """.format(QB=QB))
    for s in range(4):
        A("ds_read_b128 %s, v37 offset:%d" % (q(QA + 4 * s), 64 * s))
    A("""
    s_mov_b32 s49, 0
    s_mov_b32 s59, {scale}
    """.format(scale=f32(128 ** -0.5)))
    ST(5)
    A("""
    s_waitcnt lgkmcnt(0)
    s_cmp_lg_u32 s61, 0
    s_cbranch_scc1 L_k_mf
    """)
    A.label("L_k")
    wait_full(48)
    for tau in range(4):
        for s in range(4):
            A("ds_read_b128 %s, v%d offset:%d" % (q(W + 16 * tau + 4 * s), AD[s], 4096 * tau))
    A.label("L_k_mf")
    for tau in range(4):
        for s in range(4):
            k = tau * 4 + s
            A("s_waitcnt lgkmcnt(%d)" % (15 - k))
            A("v_mfma_f32_16x16x32_bf16 %s, %s, %s, %s" % (q(DK + 4 * tau), q(QA + 4 * s), q(W + 16 * tau + 4 * s), "0" if s == 0 else q(DK + 4 * tau)))
    A("""
    s_add_u32 s50, s49, 1
    v_mov_b32 v{t}, s50
    s_mov_b64 exec, 1
    ds_write_b32 v{free}, v{t}
    s_mov_b64 exec, -1
    v_cndmask_b32 v{t}, v{d0}, v{d1}, s[66:67]
    v_cndmask_b32 v{t}, v{t}, v{d2}, s[68:69]
    v_cndmask_b32 v{t}, v{t}, v{d3}, s[70:71]
    """.format(t=VT1, free=VFREE, d0=DK, d1=DK + 4, d2=DK + 8, d3=DK + 12))
    rbf(VT1, VT1)
    A("v_mul_f32 v%d, s59, v%d" % (VT1, VT1))
    rbf(VT1, VT1)
    A("v_max_f32 v%d, v%d, v%d" % (VMAX, VMAX, VT1))
    A("ds_write_b32 v%d, v%d" % (VSC, VT1))
    A("v_add_u32 v%d, 0x100, v%d" % (VSC, VSC))
    A("""
    s_cmp_ge_u32 s49, 7
    s_cbranch_scc1 L_k_nogate
    ds_read_b32 v{h0}, v{vh}
    ds_read_b32 v{h1}, v{vh} offset:4
    ds_read_b32 v{h2}, v{vh} offset:8
    v_add_u32 v{vh}, 12, v{vh}
    s_cmp_lg_u32 s49, 0
    s_cbranch_scc1 L_k_gop
    s_waitcnt vmcnt(0)
    """.format(h0=AT, h1=AT + 1, h2=AT + 2, vh=VH))
    for i in range(2):
        A("v_lshlrev_b32 v%d, 16, v%d" % (GW + 2 * i, GW + 10 + i))
        A("v_and_b32 v%d, 0xffff0000, v%d" % (GW + 2 * i + 1, GW + 10 + i))
        A("v_lshlrev_b32 v%d, 16, v%d" % (GW + 4 + 2 * i, GW + 12 + i))
        A("v_and_b32 v%d, 0xffff0000, v%d" % (GW + 4 + 2 * i + 1, GW + 12 + i))
    A.label("L_k_gop")
    for dd in range(3): A("v_mov_b32 v%d, 0" % (AT + 4 + dd))
    A("s_waitcnt lgkmcnt(0)")
    C0 = f32(-2.0 * 0.7978845608028654 * 1.4426950408889634)
    for pr in range(6):
        dd, i = pr // 2, pr % 2
        a, b, c, d_ = [GT + 8 * (pr % 2) + k for k in range(4)]
        A("""
        v_mul_f32 v{a}, v{w1a}, v{h}
        v_mul_f32 v{b}, v{w1b}, v{h}
        v_cvt_pk_bf16_f32 v{a}, v{a}, v{b}
        v_and_b32 v{b}, 0xffff0000, v{a}
        v_lshlrev_b32 v{a}, 16, v{a}
        v_add_f32 v{a}, v{b1a}, v{a}
        v_add_f32 v{b}, v{b1b}, v{b}
        v_cvt_pk_bf16_f32 v{a}, v{a}, v{b}
        v_and_b32 v{b}, 0xffff0000, v{a}
        v_lshlrev_b32 v{a}, 16, v{a}
        v_mul_f32 v{c}, v{a}, v{a}
        v_mul_f32 v{d}, v{b}, v{b}
        v_fmaak_f32 v{c}, v{c}, v{c1}, {C0}
        v_fmaak_f32 v{d}, v{d}, v{c1}, {C0}
        v_mul_f32 v{c}, v{a}, v{c}
        v_mul_f32 v{d}, v{b}, v{d}
        v_exp_f32 v{c}, v{c}
        v_exp_f32 v{d}, v{d}
        v_add_f32 v{c}, 1.0, v{c}
        v_add_f32 v{d}, 1.0, v{d}
        v_rcp_f32 v{c}, v{c}
        v_rcp_f32 v{d}, v{d}
        v_mul_f32 v{a}, v{a}, v{c}
        v_mul_f32 v{b}, v{b}, v{d}
        v_cvt_pk_bf16_f32 v{a}, v{a}, v{b}
        v_dot2c_f32_bf16 v{acc}, v{w2}, v{a}
        """.format(w1a=GW + 2 * i, w1b=GW + 2 * i + 1, b1a=GW + 4 + 2 * i, b1b=GW + 4 + 2 * i + 1, w2=GW + 8 + i,
                   a=a, b=b, c=c, d=d_, h=AT + dd, c1=VC1, C0=C0, acc=AT + 4 + dd))
    for pat in ("quad_perm:[1,0,3,2] row_mask:0xf", "quad_perm:[2,3,0,1] row_mask:0xf", "row_half_mirror row_mask:0xf",
                "row_mirror row_mask:0xf", "row_bcast:15 row_mask:0xa", "row_bcast:31 row_mask:0xc"):
        for dd in range(3):
            A("v_add_f32_dpp v{r}, v{r}, v{r} {p} bank_mask:0xf".format(r=AT + 4 + dd, p=pat))
    A("""
    s_mov_b32 exec_lo, 0
    s_brev_b32 exec_hi, 1
    ds_write_b32 v{vga}, v{a0}
    ds_write_b32 v{vga}, v{a1} offset:4
    ds_write_b32 v{vga}, v{a2} offset:8
    s_mov_b64 exec, -1
    v_add_u32 v{vga}, 12, v{vga}
    """.format(vga=VGA, a0=AT + 4, a1=AT + 5, a2=AT + 6))
    A.label("L_k_nogate")
    A("""
    s_add_u32 s49, s49, 1
    s_add_u32 s48, s48, 32
    s_cmp_lt_u32 s49, 8
    s_cbranch_scc1 L_k
    """)
    ST(6)
    A("""
    s_lshl_b32 s57, s35, 11
    s_add_u32 s57, s57, {SC}
    v_lshl_add_u32 v37, v1, 5, s57
    s_waitcnt lgkmcnt(0)
    ds_read_b128 v[40:43], v37
    ds_read_b128 v[44:47], v37 offset:16
    """.format(GY=GY, vga=VGA, SC=SC))
    wave_red("v_max_f32", VMAX, 58)
    A("s_mov_b32 s59, %s" % f32(1.4426950408889634))
    A("s_waitcnt lgkmcnt(0)")
    for k in range(8): A("v_subrev_f32 v%d, s58, v%d" % (40 + k, 40 + k))
    for k in range(8): A("v_mul_f32 v%d, s59, v%d" % (40 + k, 40 + k))
    for k in range(8): A("v_exp_f32 v%d, v%d" % (40 + k, 40 + k))
    A("v_add_f32 v48, v40, v41")
    for k in range(2, 8): A("v_add_f32 v48, v48, v%d" % (40 + k))
    wave_red("v_add_f32", 48, 56)
    A("""
    v_mov_b32 v50, s58
    v_mov_b32 v51, s56
    s_lshl_b32 s57, s35, 3
    s_add_u32 s57, s57, {MX}
    v_mov_b32 v49, s57
    s_mov_b64 exec, 1
    ds_write_b64 v49, v[50:51]
    s_mov_b64 exec, -1
    """.format(MX=FL + F_MX))
    cbar(F_BAR1)
    A("""
    v_and_b32 v49, 7, v1
    v_lshlrev_b32 v49, 3, v49
    v_add_u32 v49, {MX}, v49
    ds_read_b64 v[50:51], v49
    s_waitcnt lgkmcnt(0)
    v_mov_b32 v52, v50
    v_max_f32_dpp v52, v52, v52 quad_perm:[1,0,3,2] row_mask:0xf bank_mask:0xf
    v_max_f32_dpp v52, v52, v52 quad_perm:[2,3,0,1] row_mask:0xf bank_mask:0xf
    v_max_f32_dpp v52, v52, v52 row_half_mirror row_mask:0xf bank_mask:0xf
    v_sub_f32 v50, v50, v52
    v_mul_f32 v50, s59, v50
    v_exp_f32 v50, v50
    v_mul_f32 v50, v50, v51
    v_add_f32_dpp v50, v50, v50 quad_perm:[1,0,3,2] row_mask:0xf bank_mask:0xf
    v_add_f32_dpp v50, v50, v50 quad_perm:[2,3,0,1] row_mask:0xf bank_mask:0xf
    v_add_f32_dpp v50, v50, v50 row_half_mirror row_mask:0xf bank_mask:0xf
    v_sub_f32 v52, s58, v52
    v_mul_f32 v52, s59, v52
    v_exp_f32 v52, v52
    v_rcp_f32 v50, v50
    v_mul_f32 v52, v52, v50
    """.format(MX=FL + F_MX))
    for k in range(8): A("v_mul_f32 v%d, v%d, v52" % (40 + k, 40 + k))
    for k in range(8): A("v_cvt_pk_bf16_f32 v%d, v%d, v%d" % (40 + k, 40 + k, 40 + k))
    A("""
    ds_write_b128 v37, v[40:43]
    ds_write_b128 v37, v[44:47] offset:16
    s_mov_b32 s40, s32
    s_mov_b32 s41, s33
    s_mov_b32 s42, {wss}
    s_mov_b32 s44, s16
    s_mov_b32 s45, s17
    s_mov_b32 s46, {wosz}
    """.format(wosz=4096 * 1280, wss=WS_SIZE, fl=VFL, n=F_NONCE, nx=NX))
    A("""
    s_lshl_b32 s57, s35, 14
    v_xor_b32 v38, v2, v3
    v_lshlrev_b32 v38, 4, v38
    v_lshl_add_u32 v38, v2, 8, v38
    v_add_u32 v{a0}, s57, v38
    v_xor_b32 v{a1}, 0x440, v{a0}
    v_xor_b32 v{a2}, 0x880, v{a0}
    v_xor_b32 v{a3}, 0xcc0, v{a0}
    s_lshl_b32 s57, s35, 11
    s_add_u32 s57, s57, {SC}
    v_lshl_add_u32 v{vsc}, v2, 4, s57
    v_mov_b32 v{acc}, 0
    v_mov_b32 v{acc1}, 0
    v_mov_b32 v{acc2}, 0
    v_mov_b32 v{acc3}, 0
    s_mov_b32 s49, 0
    """.format(a0=AD[0], a1=AD[1], a2=AD[2], a3=AD[3], SC=SC, vsc=VSC, acc=ACC, acc1=ACC + 1, acc2=ACC + 2, acc3=ACC + 3))
    A("""
    v_mul_u32_u24 v{vh}, 5120, v2
    v_lshl_add_u32 v{vh}, v3, 4, v{vh}
    s_lshl_b32 s55, s37, 7
    s_lshl_b32 s56, s35, 4
    s_add_u32 s55, s55, s56
    s_mul_i32 s55, s55, 1280
    """.format(vh=VH))
    VD = 32
    ST(7)
    assert fine
    NIT = 7
    A("""
    s_add_u32 s54, s55, 3840
    s_mul_i32 s61, s36, %d
    s_cmp_ge_u32 s61, 7
    s_cselect_b32 s61, 0, s61
    """ % WOROT)
    A.label("L_v")
    for k in range(7):
        if k < 6:
            A("s_cmp_lg_u32 s61, %d" % k)
            A("s_cbranch_scc1 L_v_wo%d" % k)
        for u in range(3 * k, min(3 * k + 3, 20)):
            a, cb = u // 5, u % 5
            if 'o' not in ABL:
                if a < 3: A("buffer_load_dwordx4 %s, v%d, s[44:47], s55 offen offset:%d %s" % (q(W + 4 * u), VH, a * 1280 + cb * 256, OPOL))
                else: A("buffer_load_dwordx4 %s, v%d, s[44:47], s54 offen offset:%d %s" % (q(W + 4 * u), VH, cb * 256, OPOL))
        if k < 6: A("s_branch L_v_nowo")
        A.label("L_v_wo%d" % k)
    A.label("L_v_nowo")
    A("""
    s_add_u32 s61, s61, 1
    s_cmp_ge_u32 s61, 7
    s_cselect_b32 s61, 0, s61
    """)
    for tau in range(4):
        A("ds_read_b128 %s, v%d offset:%d" % (q(QA + 4 * tau), VSC, 64 * tau))
    wait_full(48)
    def vrd(k, slot):
        tau, t = k // 4, k % 4
        A("ds_read_b128 %s, v%d offset:%d" % (q(VD + 4 * slot), AD[t], 4096 * tau))
    for k in range(8): vrd(k, k)
    for k in range(16):
        at = AT + 4 * (k % 2)
        for r in range(4): A("v_and_b32 v%d, v%d, v%d" % (at + r, QA + k, M[r]))
        A("s_waitcnt lgkmcnt(%d)" % min(7, 15 - k))
        A("v_mfma_f32_16x16x32_bf16 %s, %s, %s, %s" % (q(ACC), q(at), q(VD + 4 * (k % 8)), q(ACC)))
        if k + 8 < 16: vrd(k + 8, k % 8)
    A("""
    s_add_u32 s50, s49, 9
    v_mov_b32 v{t}, s50
    s_mov_b64 exec, 1
    ds_write_b32 v{free}, v{t}
    s_mov_b64 exec, -1
    v_add_u32 v{vsc}, 0x100, v{vsc}
    s_add_u32 s49, s49, 1
    s_add_u32 s48, s48, 32
    s_cmp_lt_u32 s49, {nit}
    s_cbranch_scc1 L_v
    """.format(t=VT1, free=VFREE, vsc=VSC, nit=NIT))
    if fine:
        for tau in range(4):
            A("ds_read_b128 %s, v%d offset:%d" % (q(QA + 4 * tau), VSC, 64 * tau))
        A("s_sub_u32 s48, s48, 3")
        A("""
        s_mul_i32 s57, s35, 2080
        s_add_u32 s57, s57, {SC}
        v_lshlrev_b32 v{e2}, 5, v3
        v_lshl_add_u32 v{e2}, v2, 4, v{e2}
        v_add_u32 v{e0}, s57, v{e2}
        s_mul_i32 s57, s35, 2560
        v_add_u32 v{e2}, s57, v{e2}
        v_and_b32 v{e1}, 7, v3
        v_mul_u32_u24 v{e1}, 2080, v{e1}
        v_lshl_add_u32 v{e1}, v2, 4, v{e1}
        s_lshl_b32 s57, s35, 6
        s_add_u32 s58, s57, {SC}
        v_add_u32 v{e1}, s58, v{e1}
        v_add_u32 v{e7}, s57, v1
        v_lshlrev_b32 v{e3}, 3, v{e7}
        v_lshlrev_b32 v{e4}, 4, v{e7}
        v_mul_u32_u24 v{e5}, 0xcccd, v{e7}
        v_lshrrev_b32 v{e5}, 19, v{e5}
        v_mul_u32_u24 v{e6}, 10, v{e5}
        v_sub_u32 v{e6}, v{e7}, v{e6}
        v_mul_u32_u24 v{e5}, 5120, v{e5}
        v_lshl_add_u32 v{e5}, v{e6}, 4, v{e5}
        v_add_u32 v{e6}, {inb}, v{e3}
        s_mul_i32 s56, s38, 5120
        s_mul_i32 s54, s36, {bstr}
        s_mul_i32 s57, s37, 160
        s_add_u32 s54, s54, s57
        """.format(SC=SC, inb=INB, bstr=32 * 5120, e0=AT, e1=AT + 1, e2=AT + 2, e3=AT + 3, e4=AT + 4, e5=AT + 5, e6=AT + 6, e7=AT + 7))
        A("s_waitcnt lgkmcnt(0)")
        for tau in range(4):
            for t in range(4):
                for r in range(4): A("v_and_b32 v%d, v%d, v%d" % (VD + 16 + 4 * t + r, QA + 4 * tau + t, M[r]))
            wait_full(48, sleep=(1 if tau == 0 else 0))
            for t in range(4): vrd(4 * tau + t, t)
            A("s_add_u32 s48, s48, 1")
            for t in range(4):
                A("s_waitcnt lgkmcnt(%d)" % (3 - t))
                A("v_mfma_f32_16x16x32_bf16 %s, %s, %s, %s" % (q(ACC), q(VD + 16 + 4 * t), q(VD + 4 * t), q(ACC)))
    ST(8)
    def SKIP(lab): pass
    A("""
    s_mov_b32 exec_hi, 0
    ds_write_b128 v{e0}, {acc}
    s_mov_b64 exec, -1
    s_waitcnt vmcnt(0) lgkmcnt(0)
    s_barrier
    """.format(e0=AT, acc=q(ACC)))
    ST(9)
    A("ds_read_b128 v[32:35], v%d" % (AT + 1))
    A("ds_read_b32 v%d, v%d offset:%d" % (VT1, VFL, F_NONCE))
    A("s_waitcnt lgkmcnt(0)")
    for pat in ("quad_perm:[1,0,3,2]", "quad_perm:[2,3,0,1]", "row_half_mirror"):
        for r in range(4):
            A("v_add_f32_dpp v{r}, v{r}, v{r} {p} row_mask:0xf bank_mask:0xf".format(r=32 + r, p=pat))
    for r in range(4): A("v_cvt_pk_bf16_f32 v%d, v%d, v%d" % (32 + r, 32 + r, 32 + r))
    DO = 40
    for a in range(4):
        for r in range(4): A("v_and_b32 v%d, v%d, v%d" % (QA + 4 * a + r, 32 + a, M[r]))
    def redw(cb):
        A("s_mov_b32 exec_hi, 0")
        A("ds_write_b128 v%d, %s offset:%d" % (AT + 2, q(DO + 4 * cb), 512 * cb))
        A("s_mov_b32 exec_hi, -1")
    for cb in range(5):
        for a in range(4):
            A("v_mfma_f32_16x16x32_bf16 %s, %s, %s, %s" % (q(DO + 4 * cb), q(QA + 4 * a), q(W + 4 * (a * 5 + cb)), "0" if a == 0 else q(DO + 4 * cb)))
        if cb >= 2: redw(cb - 2)
    A("""
    v_readfirstlane_b32 s62, v{t1}
    s_xor_b32 s63, s62, {nx}
    """.format(t1=VT1, nx=NX))
    redw(3)
    redw(4)
    A("""
    v_mov_b32 v15, v{e3}
    v_mov_b32 v13, v{e4}
    v_mov_b32 v9, v{e5}
    v_mov_b32 v11, v{e6}
    s_waitcnt lgkmcnt(0)
    """.format(e3=AT + 3, e4=AT + 4, e5=AT + 5, e6=AT + 6))
    SKIP("L_e2")
    A("""
    s_barrier
    s_cmp_ge_u32 s35, 5
    s_cbranch_scc1 L_nored
    L_e2:
    """)
    ST(10)
    for w in range(8):
        A("ds_read_b64 %s, v15 offset:%d" % (d2(32 + 2 * w), 2560 * w))
    for w in range(1, 8):
        A("s_waitcnt lgkmcnt(%d)" % (7 - w))
        A("v_add_f32 v32, v32, v%d" % (32 + 2 * w))
        A("v_add_f32 v33, v33, v%d" % (33 + 2 * w))
    A("""
    v_xor_b32 v34, s62, v32
    v_xor_b32 v35, s63, v33
    """)
    SKIP("L_e3")
    A("""
    buffer_store_dwordx4 v[32:35], v13, s[40:43], s56 offen SSC
    s_mov_b32 s65, 0
    """.replace("SSC", SSC))
    ST(11)
    if ACKW: A("s_waitcnt vmcnt(0)")
    if ACKW > 1: A("s_sleep %d" % ACKW)
    if NPOLL == 1:
        A("""
        L_ppoll:
        buffer_load_dwordx4 v[36:39], v9, s[40:43], s54 offen {lsc}
        s_waitcnt vmcnt(0)
        v_xor_b32 v38, v38, v36
        v_xor_b32 v39, v39, v37
        v_cmp_ne_u32 vcc, s62, v38
        v_cmp_ne_u32 s[72:73], s63, v39
        s_or_b64 vcc, vcc, s[72:73]
        s_and_b64 exec, exec, vcc
        s_cbranch_execz L_pdone
        s_add_u32 s65, s65, 1
        s_cmp_ge_u32 s65, 0x20000
        s_cbranch_scc1 L_pdone
        {sl}
        s_branch L_ppoll
        L_pdone:
        s_mov_b64 exec, -1
        ds_write_b64 v11, v[36:37]
        s_waitcnt lgkmcnt(0)
        """.format(lsc=LSC, sl=("s_sleep %d" % PSL if PSL else "")))
    else:
        sets = [40 + 4 * i for i in range(NPOLL)]
        A("s_mov_b64 s[74:75], -1")
        for i, r in enumerate(sets):
            A("buffer_load_dwordx4 %s, v9, s[40:43], s54 offen %s" % (q(r), LSC))
            if i < NPOLL - 1: A("s_sleep %d" % PST)
        A.label("L_ppoll")
        for i, r in enumerate(sets):
            A("""
            s_waitcnt vmcnt({n})
            v_xor_b32 v38, v{r2}, v{r0}
            v_xor_b32 v39, v{r3}, v{r1}
            v_cmp_eq_u32 vcc, s62, v38
            v_cmp_eq_u32 s[72:73], s63, v39
            s_and_b64 vcc, vcc, s[72:73]
            v_cndmask_b32 v36, v36, v{r0}, vcc
            v_cndmask_b32 v37, v37, v{r1}, vcc
            s_andn2_b64 exec, exec, vcc
            s_cbranch_execz L_pdone
            buffer_load_dwordx4 {rq}, v9, s[40:43], s54 offen {lsc}
            """.format(n=NPOLL - 1, r0=r, r1=r + 1, r2=r + 2, r3=r + 3, rq=q(r), lsc=LSC))
        A("""
        s_add_u32 s65, s65, 1
        s_cmp_lt_u32 s65, 0x10000
        s_cbranch_scc1 L_ppoll
        L_pdone:
        s_mov_b64 exec, -1
        ds_write_b64 v11, v[36:37]
        s_waitcnt lgkmcnt(0)
        """)
    ST(12)
    A("s_branch L_red_done")
    A.label("L_nored")
    A("""
    s_cmp_lg_u32 s35, 5
    s_cbranch_scc1 L_red_done
    L_e3:
    v_lshrrev_b32 v8, 3, v1
    v_min_u32 v8, 4, v8
    v_and_b32 v9, 7, v1
    v_mul_u32_u24 v10, 320, v9
    v_lshl_add_u32 v10, v8, 4, v10
    v_add_u32 v10, {inb}, v10
    v_lshlrev_b32 v11, 4, v8
    v_add_u32 v11, {gx}, v11
    ds_read_b128 v[48:51], v11
    ds_read_b128 v[52:55], v11 offset:128
    v_lshlrev_b32 v13, 3, v8
    s_mul_i32 s55, s36, 1280
    s_mul_i32 s57, s37, 40
    s_add_u32 s55, s55, s57
    s_mov_b32 s44, s28
    s_mov_b32 s45, s29
    s_mov_b32 s46, 10240
    s_waitcnt lgkmcnt(0)
    """.format(inb=INB, gx=GX))
    SKIP("L_e4")
    A.label("L_red_done")
    A("""
    s_barrier
    s_cmp_lg_u32 s35, 5
    s_cbranch_scc1 L_fin
    L_e4:
    """)
    for i in range(4):
        A("ds_read_b128 %s, v10 offset:%d" % (q(32 + 4 * i), 80 * i))
    for i in range(1, 4):
        A("s_waitcnt lgkmcnt(%d)" % (3 - i))
        for r in range(4): A("v_add_f32 v%d, v%d, v%d" % (32 + r, 32 + r, 32 + 4 * i + r))
    for pat in ("quad_perm:[1,0,3,2]", "quad_perm:[2,3,0,1]", "row_half_mirror"):
        for r in range(4):
            A("v_add_f32_dpp v{r}, v{r}, v{r} {p} row_mask:0xf bank_mask:0xf".format(r=32 + r, p=pat))
    for pr in range(2):
        a, b = 32 + 2 * pr, 33 + 2 * pr
        A("""
        v_cvt_pk_bf16_f32 v{a}, v{a}, v{b}
        v_and_b32 v{b}, 0xffff0000, v{a}
        v_lshlrev_b32 v{a}, 16, v{a}
        v_mul_f32 v{a}, v{a}, v{g0}
        v_mul_f32 v{b}, v{b}, v{g1}
        v_cvt_pk_bf16_f32 v{a}, v{a}, v{b}
        v_and_b32 v{b}, 0xffff0000, v{a}
        v_lshlrev_b32 v{a}, 16, v{a}
        v_add_f32 v{a}, v{a}, v{x0}
        v_add_f32 v{b}, v{b}, v{x1}
        v_cvt_pk_bf16_f32 v{o}, v{a}, v{b}
        """.format(a=a, b=b, g0=48 + 2 * pr, g1=49 + 2 * pr, x0=52 + 2 * pr, x1=53 + 2 * pr, o=36 + pr))
    if REH:
        A("""
        s_cmp_lg_u32 s76, 0
        s_mov_b32 s76, 0
        s_cbranch_scc1 L_epi
        """)
    A("""
    s_mov_b32 exec_lo, 0x01010101
    s_mov_b32 exec_hi, 1
    buffer_store_dwordx2 v[36:37], v13, s[44:47], s55 offen {osc}
    """.format(osc=OSC))
    if XDEL:
        for i in range(XDEL): A("s_sleep 37")
    A.label("L_fin")
    if stamp and stamp != 4: A("s_waitcnt vmcnt(0)")
    ST(13)
    STORE_ST()
    A.label("L_end")
    A("s_endpgm")
    A.raw('.section .rodata,"a"'); A.raw(".p2align 6"); A.raw(".amdhsa_kernel " + KN)
    A.raw("  .amdhsa_next_free_vgpr %d" % NV); A.raw("  .amdhsa_next_free_sgpr 102"); A.raw("  .amdhsa_accum_offset %d" % NV)
    A.raw("  .amdhsa_group_segment_fixed_size 0"); A.raw("  .amdhsa_kernarg_size 104"); A.raw("  .amdhsa_user_sgpr_count 2")
    A.raw("  .amdhsa_user_sgpr_kernarg_segment_ptr 1"); A.raw("  .amdhsa_system_sgpr_workgroup_id_x 1")
    A.raw("  .amdhsa_float_denorm_mode_32 3")
    A.raw(".end_amdhsa_kernel")
    open(out, "w").write(A.text())

if __name__ == "__main__":
    gen()
```
